```python
import torch

def _softmax(x, axis=-1):
    return torch.softmax(x, dim=axis)
def _gelu(x):
    return torch.nn.functional.gelu(x, approximate="tanh")
def _silu(x):
    return torch.nn.functional.silu(x)
def _sigmoid(x):
    return torch.sigmoid(x)
def _layernorm(x, axis=-1, eps=1e-5):
    m = x.mean(dim=axis, keepdim=True)
    v = x.var(dim=axis, keepdim=True, unbiased=False)
    return (x - m) / torch.sqrt(v + eps)
def _scatter_add(tgt, idx, src, axis=0):
    return tgt.clone().index_add_(axis, idx, src)
def _segment_sum(src, seg, n):
    out = torch.zeros((n,) + src.shape[1:], dtype=src.dtype)
    return out.index_add_(0, seg, src)
def _pad(x, pw):
    flat = tuple(v for pair in reversed(pw) for v in pair)
    return torch.nn.functional.pad(x, flat)

kernel_name = 'interleave_layers__grouped_kv_mqa__dense_activation_mish__prompt'

def setup_inputs():

    _w = (lambda a: (lambda t: t.to(torch.bfloat16) if t.is_floating_point() else t)(torch.as_tensor(a)))
    def _A_setup():
        B, S, D, H = 1, 2048, 640, 32
        Dh = D // H
        return {
            "x": _w((lambda *s: torch.randn(*s, dtype=torch.bfloat16) * 0.05)(B, S, D)),
            "wq": _w((lambda *s: torch.randn(*s, dtype=torch.bfloat16) * 0.05)(D, H * Dh)),
            "wk": _w((lambda *s: torch.randn(*s, dtype=torch.bfloat16) * 0.05)(D, Dh)),
            "wv": _w((lambda *s: torch.randn(*s, dtype=torch.bfloat16) * 0.05)(D, Dh)),
            "wo": _w((lambda *s: torch.randn(*s, dtype=torch.bfloat16) * 0.05)(H * Dh, D)),
        }
    _A_in = _A_setup()

    def _B_setup():
        B, S, D, F = 1, 2048, 640, 1728
        return {
            "x": _w((lambda *s: torch.randn(*s, dtype=torch.bfloat16) * 0.05)(B, S, D)),
            "w1": _w((lambda *s: torch.randn(*s, dtype=torch.bfloat16) * 1.6)(D, F) * (D ** -0.5)),
            "b1": _w((lambda *s: torch.randn(*s, dtype=torch.bfloat16) * 0.2)(F)),
            "w2": _w((lambda *s: torch.randn(*s, dtype=torch.bfloat16) * 0.2)(F, D) * (F ** -0.5)),
        }
    _B_in = _B_setup()

    return {
        "A_x": _A_in["x"],
        "A_wq": _A_in["wq"],
        "A_wk": _A_in["wk"],
        "A_wv": _A_in["wv"],
        "A_wo": _A_in["wo"],
        "B_x": _B_in["x"],
        "B_w1": _B_in["w1"],
        "B_b1": _B_in["b1"],
        "B_w2": _B_in["w2"],
    }

def reference(A_x, A_wq, A_wk, A_wv, A_wo, B_x, B_w1, B_b1, B_w2):
    def _A_ref(x, wq, wk, wv, wo):
        B, S, D = x.shape
        H = 32
        Dh = D // H
        q = (lambda x, *d: x.permute(*d))((x @ wq).reshape(B, S, H, Dh), 0, 2, 1, 3)
        k = x @ wk
        v = x @ wv
        scores = torch.einsum("bhqd,bkd->bhqk", q, k) * (Dh ** -0.5)
        p = _softmax(scores, axis=-1)
        o = torch.einsum("bhqk,bkd->bhqd", p, v)
        return (lambda x, *d: x.permute(*d))(o, 0, 2, 1, 3).reshape(B, S, H * Dh) @ wo

    def _B_ref(x, w1, b1, w2):
        h = torch.einsum("bsd,df->bsf", x, w1) + b1
        sp = torch.log1p(torch.exp(-torch.abs(h))) + torch.where(h > 0, h, torch.zeros_like(h))
        act = h * torch.tanh(sp)
        return torch.einsum("bsf,fd->bsd", act, w2)

    x = A_x
    x = x + _A_ref(_layernorm(x, axis=-1), A_wq, A_wk, A_wv, A_wo)
    x = x + _B_ref(_layernorm(x, axis=-1), B_w1, B_b1, B_w2)
    x = x + _A_ref(_layernorm(x, axis=-1), A_wq, A_wk, A_wv, A_wo)
    x = x + _B_ref(_layernorm(x, axis=-1), B_w1, B_b1, B_w2)
    return x
```

```python
import re

VB, AB, SB = 0, 256, 1000
VCC = (SB + 106, SB + 107)
EXEC = (SB + 126, SB + 127)
M0 = SB + 124
SCC = SB + 200

_reg_re = re.compile(r'^(-?)(abs\()?\|?([vas])(\d+|\[(\d+):(\d+)\])\)?\|?$')


def regs_of(tok):
    tok = tok.strip()
    if tok == 'vcc':
        return list(VCC)
    if tok == 'vcc_lo':
        return [VCC[0]]
    if tok == 'vcc_hi':
        return [VCC[1]]
    if tok == 'exec':
        return list(EXEC)
    if tok == 'exec_lo':
        return [EXEC[0]]
    if tok == 'exec_hi':
        return [EXEC[1]]
    if tok == 'm0':
        return [M0]
    m = _reg_re.match(tok)
    if not m:
        return []
    base = {'v': VB, 'a': AB, 's': SB}[m.group(3)]
    if m.group(5) is not None:
        return list(range(base + int(m.group(5)), base + int(m.group(6)) + 1))
    return [base + int(m.group(4))]


def R(base, n=1):
    k, i = ('v', base) if base < 256 else ('a', base - 256)
    assert i + n <= 256, (base, n)
    return f"{k}{i}" if n == 1 else f"{k}[{i}:{i + n - 1}]"


def S(i, n=1):
    return f"s{i}" if n == 1 else f"s[{i}:{i + n - 1}]"


TRANS = ('v_exp_f32', 'v_log_f32', 'v_rcp_f32', 'v_rsq_f32', 'v_sqrt_f32', 'v_sin_f32', 'v_cos_f32')
NODST_S = ('s_cmp', 's_cbranch', 's_branch', 's_barrier', 's_waitcnt', 's_nop', 's_setprio', 's_sleep', 's_endpgm',
           's_bitcmp', 's_setpc')


class Ins:
    __slots__ = ('text', 'op', 'cls', 'rd', 'wr', 'passes', 'srcC', 'srcAB', 'ws', 'wide', 'dpp', 'perm', 'lane',
                 'isload', 'isstore', 'dma', 'tag', 'trans', 'data')


def parse(text):
    t = text.split(';')[0].strip()
    i = Ins()
    i.text = text
    sp = t.split(None, 1)
    op = sp[0]
    i.op = op
    rest = sp[1] if len(sp) > 1 else ''
    ops = [x.strip() for x in rest.split(',')] if rest else []
    mods = ''
    if ops:
        last = ops[-1].split(None, 1)
        if len(last) > 1:
            ops[-1] = last[0]
            mods = last[1]
    i.rd, i.wr = set(), set()
    i.passes = 0
    i.srcC, i.srcAB = set(), set()
    i.ws = 1
    i.wide = i.dpp = i.perm = i.lane = i.isload = i.isstore = i.dma = i.trans = False
    i.tag = None
    i.data = set()
    rg = [regs_of(o) for o in ops]
    if op.startswith('v_mfma') or op.startswith('v_smfmac'):
        i.cls = 'mfma'
        i.passes = 4 if '16x16' in op else 8
        i.wr = set(rg[0])
        i.srcAB = set(rg[1]) | set(rg[2])
        if op.startswith('v_smfmac'):
            i.srcC = set(rg[0])
            i.srcAB |= set(rg[3])
        else:
            i.srcC = set(rg[3])
        i.rd = i.srcAB | i.srcC
    elif op.startswith('v_'):
        i.cls = 'valu'
        base = op.replace('_e32', '').replace('_e64', '').replace('_dpp', '').replace('_sdwa', '')
        i.trans = base in TRANS
        i.wr = set(rg[0])
        srcs = rg[1:]
        if re.match(r'v_(add|sub|subrev|addc|subb|subbrev)_co_', base):
            i.wr |= set(rg[1])
            srcs = rg[2:]
        for r in srcs:
            i.rd |= set(r)
        if base.startswith('v_fmac') or base.startswith('v_dot2c') or base.startswith('v_permlane') or base == 'v_swap_b32' \
                or base.startswith('v_writelane') or base.startswith('v_pk_fmac'):
            i.rd |= set(rg[0])
        if base.startswith('v_permlane') or base == 'v_swap_b32':
            i.wr |= set(rg[1])
        if base.startswith('v_permlane'):
            i.perm = True
        if 'row_' in mods or 'quad_perm' in mods or 'wave_' in mods:
            i.dpp = True
            i.rd |= set(rg[0])
        if base.startswith('v_readfirstlane') or base.startswith('v_readlane'):
            i.lane = True
        if base.startswith('v_cmpx'):
            raise Exception('avoid v_cmpx')
        i.rd |= set(EXEC)
    elif op.startswith('buffer_') or op.startswith('global_'):
        i.cls = 'vmem'
        allm = mods.split()
        if op in ('buffer_wbl2', 'buffer_inv'):
            i.isstore = True
        elif op.startswith('buffer_load'):
            if 'lds' in allm:
                i.dma = True
                for r in rg:
                    i.rd |= set(r)
                i.rd.add(M0)
            else:
                i.isload = True
                i.wr = set(rg[0])
                for r in rg[1:]:
                    i.rd |= set(r)
        elif op.startswith('buffer_store') or op.startswith('buffer_atomic'):
            i.isstore = True
            i.data = set(rg[0])
            for r in rg:
                i.rd |= set(r)
            i.wide = len(rg[0]) >= 3
        elif op.startswith('global_load'):
            i.isload = True
            i.wr = set(rg[0])
            for r in rg[1:]:
                i.rd |= set(r)
        elif op.startswith('global_store') or op.startswith('global_atomic'):
            i.isstore = True
            i.data = set(rg[1])
            for r in rg:
                i.rd |= set(r)
            i.wide = len(rg[1]) >= 3
        else:
            raise Exception(text)
    elif op.startswith('ds_'):
        i.cls = 'lds'
        if op.startswith('ds_read') or op.startswith('ds_bpermute') or op.startswith('ds_swizzle'):
            i.isload = True
            i.wr = set(rg[0])
            for r in rg[1:]:
                i.rd |= set(r)
        else:
            i.isstore = True
            for r in rg:
                i.rd |= set(r)
    elif op.startswith('s_load') or op.startswith('s_memtime') or op.startswith('s_memrealtime'):
        i.cls = 'smem'
        i.isload = True
        i.wr = set(rg[0])
        for r in rg[1:]:
            i.rd |= set(r)
    elif op.startswith('s_'):
        i.cls = 'salu'
        if any(op.startswith(p) for p in NODST_S):
            for r in rg:
                i.rd |= set(r)
            if op == 's_nop':
                i.ws = int(ops[0], 0) + 1
        else:
            i.wr = set(rg[0])
            for r in rg[1:]:
                i.rd |= set(r)
            if 'saveexec' in op:
                i.wr |= set(EXEC)
    else:
        raise Exception('unknown ' + text)
    return i


MF_VALU = {4: 8, 8: 12}
MF_COVL = {4: 6, 8: 10}
MF_WARC = {4: 3, 8: 7}


class Prog:
    def __init__(self):
        self.out = []
        self.vm = []
        self.lg = []
        self.hist = []
        self.pos = 0
        self.nnop = 0
        self.count = {}

    def raw(self, text):
        self.out.append(text)

    def comment(self, text):
        self.out.append('; ' + text)

    def label(self, name):
        self.out.append(name + ':')

    def _issue(self, ins):
        self.out.append('  ' + ins.text)
        self.hist.append((ins, self.pos))
        self.pos += ins.ws
        if len(self.hist) > 40:
            self.hist.pop(0)
        self.count[ins.cls] = self.count.get(ins.cls, 0) + 1

    def _wait(self, vm=None, lg=None):
        parts = []
        if vm is not None and vm < len(self.vm):
            vm = min(vm, 63)
            parts.append(f'vmcnt({vm})')
            self.vm = self.vm[len(self.vm) - vm:] if vm > 0 else []
        if lg is not None and lg < len(self.lg):
            if any(e.cls == 'smem' for e in self.lg):
                lg = 0
            lg = min(lg, 15)
            parts.append(f'lgkmcnt({lg})')
            self.lg = self.lg[len(self.lg) - lg:] if lg > 0 else []
        if parts:
            self._issue(parse('s_waitcnt ' + ' '.join(parts)))

    def wait(self, vm=None, lg=None):
        self._wait(vm, lg)

    def wait_tag(self, tag):
        idx = [k for k, e in enumerate(self.vm) if e.tag == tag]
        if idx:
            self._wait(vm=len(self.vm) - 1 - max(idx))

    def forget(self):
        self.vm, self.lg = [], []

    def drain(self):
        self._issue(parse('s_waitcnt vmcnt(0) lgkmcnt(0)'))
        self.forget()

    def I(self, text, tag=None, nowaw=False):
        ins = parse(text)
        ins.tag = tag
        touch = ins.rd | ins.wr
        need_vm = need_lg = None
        for k, e in enumerate(self.vm):
            if e.isload and (e.wr & (ins.rd if (nowaw and ins.cls == 'vmem') else touch)):
                need_vm = len(self.vm) - 1 - k
        for k, e in enumerate(self.lg):
            if e.isload and (e.wr & touch):
                need_lg = len(self.lg) - 1 - k
        if need_vm is not None or need_lg is not None:
            self._wait(need_vm, need_lg)
        need = 0
        for (p, at) in self.hist:
            dist = self.pos - at - p.ws
            req = 0
            if p.cls == 'valu':
                vw = {r for r in p.wr if r < SB}
                sw = {r for r in p.wr if r >= SB}
                if ins.cls == 'mfma' and (vw & ins.rd):
                    req = max(req, 2)
                if ins.cls == 'valu':
                    if p.trans and not ins.trans and (vw & ins.rd):
                        req = max(req, 1)
                    if (ins.perm or ins.dpp) and (vw & ins.rd):
                        req = max(req, 2)
                    if ins.lane and (vw & ins.rd):
                        req = max(req, 1)
                    if sw & ins.rd:
                        req = max(req, 4 if ins.lane or ins.op.startswith('v_div_fmas') else 2)
                if p.trans and ins.cls in ('vmem', 'lds') and (vw & ins.rd):
                    req = max(req, 1)
                if ins.cls == 'vmem' and (sw & ins.rd):
                    req = max(req, 5)
                if ins.cls in ('salu', 'smem') and (sw & ins.rd):
                    req = max(req, 1)
            elif p.cls == 'mfma':
                if ins.cls == 'mfma':
                    if p.wr & ins.srcAB:
                        req = max(req, MF_VALU[p.passes])
                    if p.wr & ins.srcC:
                        if not (p.wr == ins.srcC and p.passes == ins.passes):
                            req = max(req, MF_COVL[p.passes])
                    elif (p.wr & ins.wr) and not (p.wr == ins.wr and p.passes == ins.passes):
                        req = max(req, MF_COVL[p.passes])
                elif ins.cls == 'valu':
                    if p.wr & (ins.rd | ins.wr):
                        req = max(req, MF_VALU[p.passes])
                    if p.srcC & ins.wr:
                        req = max(req, MF_WARC[p.passes])
                elif ins.cls in ('vmem', 'lds'):
                    if p.wr & (ins.rd | ins.wr):
                        req = max(req, MF_VALU[p.passes])
                    if p.srcC & ins.wr:
                        req = max(req, MF_WARC[p.passes])
            elif p.cls == 'salu':
                if M0 in p.wr and ins.dma:
                    req = max(req, 1)
            elif p.cls == 'vmem':
                if p.wide and (p.data & ins.wr):
                    req = max(req, 2)
            need = max(need, req - dist)
        while need > 0:
            n = min(need, 16)
            self._issue(parse(f's_nop {n - 1}'))
            self.nnop += 1
            need -= n
        self._issue(ins)
        if ins.cls == 'vmem':
            self.vm.append(ins)
        elif ins.cls in ('lds', 'smem'):
            self.lg.append(ins)
        if ins.op == 's_waitcnt':
            m = re.search(r'vmcnt\((\d+)\)', ins.text)
            if m:
                n = int(m.group(1))
                self.vm = self.vm[len(self.vm) - n:] if 0 < n < len(self.vm) else ([] if n == 0 else self.vm)
            m = re.search(r'lgkmcnt\((\d+)\)', ins.text)
            if m:
                n = int(m.group(1))
                self.lg = self.lg[len(self.lg) - n:] if 0 < n < len(self.lg) else ([] if n == 0 else self.lg)
        return ins

    def run(self, items):
        for it in items:
            if callable(it):
                it(self)
            elif isinstance(it, tuple):
                self.I(it[0], tag=it[1])
            else:
                self.I(it)

    def text(self):
        return '\n'.join(self.out) + '\n'


def weave(main, fill, start=0, end=None):
    end = len(main) if end is None else end
    n = end - start
    out = []
    k = 0
    for j, m in enumerate(main):
        out.append(m)
        if start <= j < end:
            tgt = (j - start + 1) * len(fill) // n
            while k < tgt:
                out.append(fill[k])
                k += 1
    assert k == len(fill)
    return out


def flat(x):
    out = []
    for e in x:
        if isinstance(e, list):
            out.extend(flat(e))
        else:
            out.append(e)
    return out
```

```python
WQF = 0x000000
W1F = 0x200000
W2F = 0x500000
WOF = 0x800000
FLG = 0xA00000
LAY0 = 0x3000000
LSTR = 0x2000000
QF = 0x000000
KVF = 0x400000
OF = 0x500000
X1 = 0x800000
X2 = 0xC00000
STT = 0x280000
HF = 0x1000000
TILE = 41 * 1024

L_WO = 0
L_X = 0
L_EX = 81920
L_RS = 81920 + 1024
L_VT = 84 * 1024
L_RED = 102400
L_CK = L_RED + 24576
L_MX = L_RED + 32768
LDS_BYTES = 163840
```

```python
from asmlib import *
from layout import *
from prep import srd, srd_off, OOB
import math

sMODE, sWS, sXIN, sXOUT, sRB, sHG, sW = 3, 4, 6, 8, 10, 11, 12
sLB, sLBN = 20, 22
rA, rB, rC, rD, rE, rFL, rF, rG, rH = 24, 28, 32, 36, 40, 44, 48, 52, 56
sK8 = 60
s320, s640, s960 = 70, 71, 72
sKV, sRUN, sFB, sMASK8, sMASK1, sFLO = 74, 75, 76, 77, 78, 79
sP0, sP1 = 80, 81
sT = 82
vLANE, vL16, vL16B, vSIG, vL4, vIDX, vT0, vT1 = 0, 1, 2, 3, 4, 5, 6, 7
S_ = [8, 24, 40]
Q16 = [56 + 4 * q for q in range(4)]
Q8 = [72 + 2 * q for q in range(4)]
O_ = [80 + 16 * q for q in range(4)]
K16 = [144 + 4 * j for j in range(3)]
K8P = [156 + 4 * j for j in range(2)]
V_ = [164 + 8 * j for j in range(3)]
W1A = [188 + 4 * k for k in range(17)] + [256 + 4 * k for k in range(24)]
W1B = [256 + 96 + 4 * k for k in range(40)] + [168]
W2R = [172 + 4 * k for k in range(4)] + W1A + W1B[:25]
HBUF = W1B[25:41]
WQR = W2R[:41]
assert len(W2R) == 70 and len(HBUF) == 16

SRD = lambda r: f's[{r}:{r+3}]'
MF32 = lambda d, a, b, c=None: f'v_mfma_f32_32x32x16_bf16 {R(d,16)}, {R(a,4)}, {R(b,4)}, {"0" if c is None else R(c,16)}'
MF8 = lambda d, a, b: f'v_mfma_f32_32x32x8_bf16 {R(d,16)}, {R(a,2)}, {R(b,2)}, {R(d,16)}'
SMF = lambda d, a, b: f'v_smfmac_f32_32x32x32_bf16 {R(d,16)}, {R(a,4)}, {R(b,8)}, v{vIDX}'
MF16 = lambda d, a, b, first: f'v_mfma_f32_16x16x32_bf16 {R(d,4)}, {R(a,4)}, {R(b,4)}, {"0" if first else R(d,4)}'


def fragload(dst, srd_, f, extra=''):
    so = '0' if f < 8 else f's{sK8 + f // 8}'
    vo = vL16B if (f % 8) >= 4 else vL16
    return f'buffer_load_dwordx4 {R(dst,4)}, v{vo}, {SRD(srd_)}, {so} offen offset:{(f % 4) * 1024}{extra}'


class Gen:
    def __init__(self, P, dbg=None):
        self.P = P
        self.dbg = dbg or {}
        self.npoll = 0

    def signal(self, stage):
        P = self.P
        P.wait_tag('pub')
        P.I(f'buffer_store_dword v{vL16B}, v{vSIG}, {SRD(rFL)}, s{sFLO} offen offset:{stage*128} sc1')

    def poll(self, stage, smask):
        P = self.P
        n = self.npoll
        self.npoll += 1
        P.I(f's_mov_b32 s{sP0}, 0x400000')
        P.label(f'Lpoll{n}')
        P.I(f'buffer_load_dword v{vT0}, v{vL4}, {SRD(rFL)}, s{sFLO} offen offset:{stage*128} sc1')
        P.I(f's_sub_u32 s{sP0}, s{sP0}, 1')
        P.I(f's_cbranch_scc1 Lpolled{n}')
        P.I('s_waitcnt vmcnt(0)')
        P.I(f'v_cmp_ne_u32 vcc, 0, v{vT0}')
        P.I(f's_and_b32 s{sP1}, vcc_lo, s{smask}')
        P.I(f's_cmp_eq_u32 s{sP1}, s{smask}')
        P.I(f's_cbranch_scc0 Lpoll{n}')
        P.label(f'Lpolled{n}')
        P.I('s_waitcnt vmcnt(0)')

    def stamp(self, k):
        if not self.dbg.get('stamps'):
            return
        P = self.P
        P.I('s_memtime s[100:101]')
        P.I('s_waitcnt lgkmcnt(0)')
        P.I(f'v_mov_b32 v{vT1}, s100')
        P.I(f'buffer_store_dword v{vT1}, v{vSIG}, s[96:99], s95 offen offset:{k*128}')

    def prologue(self):
        P = self.P
        I = P.I
        for name, mode in (('qkv_kernel', 0), ('layer1_kernel', 1), ('layer2_kernel', 2)):
            P.raw('.p2align 8')
            P.raw(f'{name}:')
            I(f's_mov_b32 s{sMODE}, {mode}')
            if mode != 2:
                I('s_branch Lentry')
        P.label('Lentry')
        I('s_cmp_ge_u32 s2, 256')
        I('s_cbranch_scc1 Lend')
        I(f's_load_dwordx2 s[{sWS}:{sWS+1}], s[0:1], 88')
        I(f's_load_dwordx2 s[{sXIN}:{sXIN+1}], s[0:1], 0')
        I(f's_load_dwordx2 s[{sXOUT}:{sXOUT+1}], s[0:1], 72')
        I(f'v_lshrrev_b32 v{vT0}, 6, v0')
        I(f'v_and_b32 v{vLANE}, 63, v0')
        I(f'v_readfirstlane_b32 s{sW}, v{vT0}')
        I(f'v_lshlrev_b32 v{vL16}, 4, v{vLANE}')
        I(f'v_add_u32 v{vL16B}, 4096, v{vL16}')
        I(f'v_lshlrev_b32 v{vL4}, 2, v{vLANE}')
        I(f'v_mov_b32 v{vIDX}, 0xdddddddd')
        I(f's_and_b32 s13, s2, 7')
        I(f's_lshr_b32 s14, s2, 6')
        I(f's_lshl_b32 s13, s13, 2')
        I(f's_add_u32 s{sRB}, s13, s14')
        I(f's_lshr_b32 s{sHG}, s2, 3')
        I(f's_and_b32 s{sHG}, s{sHG}, 7')
        for j in range(1, 10):
            I(f's_mov_b32 s{sK8+j}, {8192*j}')
        I(f's_movk_i32 s{s320}, 320')
        I(f's_movk_i32 s{s640}, 640')
        I(f's_movk_i32 s{s960}, 960')
        I(f's_mov_b32 s{sFB}, 0')
        I(f's_lshl_b32 s13, s{sW}, 3')
        I(f's_lshl_b32 s{sMASK8}, 0xff, s13')
        I(f's_lshl_b32 s{sMASK1}, 0x11111111, s{sW}')
        I(f's_lshl_b32 s13, s{sHG}, 2')
        I(f's_add_u32 s13, s13, s{sW}')
        I(f's_lshl_b32 s13, s13, 2')
        I(f'v_mov_b32 v{vSIG}, {OOB}')
        I(f'v_mov_b32 v{vT0}, s13')
        I(f'v_cmp_eq_u32 vcc, 0, v{vLANE}')
        I(f'v_cndmask_b32 v{vSIG}, v{vSIG}, v{vT0}, vcc')
        I(f's_mul_i32 s13, s{sMODE}, {LSTR}')
        I(f's_add_u32 s13, s13, {LAY0}')
        I(f's_sub_u32 s14, s13, {LSTR}')
        I(f's_max_i32 s14, s14, 0')
        I(f's_lshr_b32 s15, s{sMODE}, 1')
        I(f's_lshl_b32 s15, s15, 5')
        I(f's_add_u32 s15, s15, s{sRB}')
        I(f's_lshl_b32 s{sFLO}, s15, 9')
        P.wait(lg=0)
        I(f's_add_u32 s{sLBN}, s{sWS}, s13')
        I(f's_addc_u32 s{sLBN+1}, s{sWS+1}, 0')
        I(f's_add_u32 s{sLB}, s{sWS}, s14')
        I(f's_addc_u32 s{sLB+1}, s{sWS+1}, 0')
        srd_off(P, rFL, sWS, FLG, 32768)
        I(f's_add_u32 s16, s{sWS}, {LAY0 + X2}')
        I(f's_addc_u32 s17, s{sWS+1}, 0')
        I(f's_cmp_eq_u32 s{sMODE}, 1')
        I(f's_cselect_b32 s{sXOUT}, s16, s{sXOUT}')
        I(f's_cselect_b32 s{sXOUT+1}, s17, s{sXOUT+1}')
        I(f's_cmp_eq_u32 s{sMODE}, 0')
        I(f's_cselect_b32 s{sXOUT}, s{sXIN}, s{sXOUT}')
        I(f's_cselect_b32 s{sXOUT+1}, s{sXIN+1}, s{sXOUT+1}')
        I(f's_cmp_eq_u32 s{sMODE}, 2')
        I(f's_cselect_b32 s{sXIN}, s16, s{sXIN}')
        I(f's_cselect_b32 s{sXIN+1}, s17, s{sXIN+1}')
        if self.dbg.get('stamps'):
            I(f's_lshl_b32 s13, s{sMODE}, 20')
            I(f's_add_u32 s13, s13, 0xB00000')
            srd_off(P, 96, sWS, 's13', 0x100000)
            I(f's_lshl_b32 s95, s{sRB}, 12')
            self.stamp(0)
        I(f's_cmp_lg_u32 s{sMODE}, 0')
        I('s_cbranch_scc1 Lattn')
        self.wq_srd()
        for k in range(41):
            I(fragload(WQR[k], rF, k))
        I('s_branch Lqkv')
        P.forget()

    def wq_srd(self):
        P = self.P
        P.I(f's_lshl_b32 s13, s{sHG}, 2')
        P.I(f's_add_u32 s13, s13, s{sW}')
        P.I(f's_mul_i32 s13, s13, {TILE}')
        srd_off(P, rF, sWS, 's13', TILE)

    def kv_loads(self, i):
        e, kb, vb = i % 2, K16[i % 3], V_[i % 3]
        L = []
        if e == 0:
            L.append(f'buffer_load_dwordx4 {R(vb,4)}, v{vL16}, {SRD(rB)}, s{sKV} offen offset:3072')
            L.append(f'buffer_load_dwordx4 {R(vb+4,4)}, v{vL16B}, {SRD(rB)}, s{sKV} offen')
            L.append(f'buffer_load_dwordx4 {R(K8P[(i//2)%2],4)}, v{vL16}, {SRD(rB)}, s{sKV} offen offset:2048')
        else:
            L.append(f'buffer_load_dwordx4 {R(vb,4)}, v{vL16B}, {SRD(rB)}, s{sKV} offen offset:1024')
            L.append(f'buffer_load_dwordx4 {R(vb+4,4)}, v{vL16B}, {SRD(rB)}, s{sKV} offen offset:2048')
        L.append(f'buffer_load_dwordx4 {R(kb,4)}, v{vL16}, {SRD(rB)}, s{sKV} offen offset:{1024*e}')
        return L

    def attention(self):
        P = self.P
        I = P.I
        P.label('Lattn')
        I(f's_lshl_b32 s13, s{sRB}, 3')
        I(f's_add_u32 s13, s13, s{sHG}')
        I(f's_mul_i32 s13, s13, 12288')
        I(f's_add_u32 s13, s13, {QF}')
        srd_off(P, rA, sLB, 's13', 12288)
        srd_off(P, rB, sLB, KVF, 32 * 7168)
        I(f's_mul_i32 s14, s{sW}, 3072')
        I(f's_xor_b32 s15, s{sW}, 1')
        I(f's_mul_i32 s15, s15, 3072')
        I(f'v_lshlrev_b32 v{vT0}, 3, v{vLANE}')
        for q in range(4):
            so = 's14' if q < 2 else 's15'
            I(f'buffer_load_dwordx4 {R(Q16[q],4)}, v{vL16}, {SRD(rA)}, {so} offen offset:{(q%2)*1536}')
            I(f'buffer_load_dwordx2 {R(Q8[q],2)}, v{vT0}, {SRD(rA)}, {so} offen offset:{(q%2)*1536+1024}')
        I(f's_mul_i32 s13, s{sHG}, 7')
        I(f's_lshl_b32 s14, s{sW}, 1')
        I(f's_add_u32 s13, s13, s14')
        I(f's_cmp_lt_u32 s13, 54')
        I(f's_cselect_b32 s{sT}, {TILE}, 0')
        I(f's_add_u32 s15, s13, 1')
        I(f's_cmp_lt_u32 s15, 54')
        I(f's_cselect_b32 s{sT+1}, {TILE}, 0')
        I(f's_cmp_lt_u32 s{sW}, 3')
        I(f's_cselect_b32 s{sT+1}, s{sT+1}, 0')
        I(f's_mov_b32 s{sT+2}, s13')
        I(f's_mul_i32 s14, s13, {TILE}')
        I(f's_add_u32 s14, s14, {W1F}')
        srd_off(P, rC, sWS, 's14', f's{sT}')
        I(f's_add_u32 s14, s14, {TILE}')
        srd_off(P, rD, sWS, 's14', f's{sT+1}')
        I(f's_mul_i32 s14, s{sHG}, 102400')
        I(f's_add_u32 s14, s14, {WOF}')
        srd_off(P, rE, sWS, 's14', 102400)
        P.label('Lattn_main')
        I(f's_and_b32 s13, s{sW}, 1')
        I(f's_mul_i32 s{sKV}, s13, {16*7168}')
        for t in self.kv_loads(0) + self.kv_loads(1):
            I(t)
        I(f's_lshr_b32 s13, s2, 3')
        I(f's_mul_i32 s13, s13, 7168')
        I(f's_mul_i32 s14, s{sW}, 1792')
        I(f's_add_u32 s13, s13, s14')
        I(f'buffer_load_dwordx4 {R(S_[2],4)}, v{vL16}, {SRD(rB)}, s13 offen')
        I(f'buffer_load_dwordx4 {R(S_[2]+4,4)}, v{vL16}, {SRD(rB)}, s13 offen offset:1024')
        I(f's_mul_i32 m0, s{sW}, 25600')
        for r in range(64):
            I(f'v_mov_b32 v{O_[0]+r}, 0')
        pre = []
        for k in range(41):
            pre.append([fragload(W1A[k], rC, k)])
        for k in range(25):
            g = []
            if k and k % 4 == 0:
                g.append('s_add_u32 m0, m0, 4096')
            g.append((f'buffer_load_dwordx4 v{vL16}, {SRD(rE)}, m0 offen offset:{(k%4)*1024} lds', 'wo'))
            pre.append(g)
        for k in range(40):
            pre.append([fragload(W1B[k], rD, k)])
        NW = 128
        extra = [[] for _ in range(NW)]
        for i in range(30):
            g = []
            if i % 2 == 0:
                g.append(f's_add_u32 s{sKV}, s{sKV}, 7168')
            extra[4 * i + 1] += g + self.kv_loads(i + 2)
        slots = [n for n in range(2, 120) if n % 4 != 1]
        for k, g in enumerate(pre):
            extra[slots[k * len(slots) // len(pre)]] += g

        def M1(n):
            return MF32(S_[n % 3], K16[(n // 4) % 3], Q16[n % 4])

        def M2(n):
            i = n // 4
            return MF8(S_[n % 3], K8P[(i // 2) % 2] + 2 * (i % 2), Q8[n % 4])

        def P1(n):
            return SMF(O_[n % 4], V_[(n // 4) % 3], S_[n % 3])

        def P2(n):
            return SMF(O_[n % 4], V_[(n // 4) % 3] + 4, S_[n % 3] + 8)

        self.stamp(1)
        I(M1(0))
        I(M2(0))
        for n in range(NW):
            s = S_[n % 3]
            E = [f'v_exp_f32 v{s+r}, v{s+r}' for r in range(16)]
            seq = []
            if n + 1 < NW:
                seq.append(M1(n + 1))
            seq += E[0:4]
            if n + 1 < NW:
                seq.append(M2(n + 1))
            seq += E[4:6] + extra[n][:2] + E[6:8]
            if n > 0:
                seq.append(P2(n - 1))
            seq += E[8:10] + extra[n][2:4] + E[10:12]
            seq.append(P1(n))
            seq += E[12:14] + extra[n][4:] + E[14:16]
            P.run(seq)
        I(P2(NW - 1))
        self.stamp(2)
        vW, vRd = S_[0], S_[0] + 1
        RX = S_[1]
        I(f's_mul_i32 s13, s{sW}, 6144')
        I(f's_add_u32 s13, s13, {L_RED}')
        I(f's_xor_b32 s14, s{sW}, 1')
        I(f's_mul_i32 s14, s14, 6144')
        I(f's_add_u32 s14, s14, {L_RED}')
        I(f'v_add_u32 v{vW}, s13, v{vL16}')
        I(f'v_add_u32 v{vRd}, s14, v{vL16}')
        for j in range(6):
            I(f'ds_write_b128 v{vW}, {R(O_[2 + j // 3] + 4 * (j % 3), 4)} offset:{1024*j}')
        P.wait(lg=0)
        I('s_barrier')
        for j in range(6):
            I(f'ds_read_b128 {R(RX + 4*j, 4)}, v{vRd} offset:{1024*j}')
        vO, vO2, vHF = S_[0] + 2, S_[0] + 3, S_[0] + 4
        I(f's_and_b32 s13, s{sHG}, 1')
        I(f's_mul_i32 s13, s13, 10')
        I(f's_lshl_b32 s14, s{sW}, 1')
        I(f's_add_u32 s14, s14, s13')
        I(f's_lshr_b32 s15, s{sW}, 1')
        I(f's_add_u32 s15, s15, s13')
        I(f's_add_u32 s15, s15, 8')
        I(f's_lshr_b32 s16, s{sHG}, 1')
        I(f's_mul_i32 s16, s16, {5*4096}')
        I(f's_lshr_b32 s17, s14, 2')
        I(f's_lshl_b32 s17, s17, 12')
        I(f's_and_b32 s14, s14, 3')
        I(f's_lshl_b32 s14, s14, 8')
        I(f's_add_u32 s14, s14, s17')
        I(f's_add_u32 s14, s14, s16')
        I(f's_lshr_b32 s17, s15, 2')
        I(f's_lshl_b32 s17, s17, 12')
        I(f's_and_b32 s15, s15, 3')
        I(f's_lshl_b32 s15, s15, 8')
        I(f's_add_u32 s15, s15, s17')
        I(f's_add_u32 s15, s15, s16')
        I(f's_and_b32 s17, s{sW}, 1')
        I(f's_lshl_b32 s17, s17, 3')
        I(f's_add_u32 s15, s15, s17')
        I(f's_mul_i32 s16, s{sRB}, 81920')
        I(f's_add_u32 s16, s16, {OF}')
        srd_off(P, rA, sLB, 's16', 81920)
        I(f'v_lshrrev_b32 v{vHF}, 5, v{vLANE}')
        I(f'v_and_b32 v{vO}, 15, v{vLANE}')
        I(f'v_lshlrev_b32 v{vO}, 4, v{vO}')
        I(f'v_bfe_u32 v{vT0}, v{vLANE}, 4, 1')
        I(f'v_lshl_add_u32 v{vO2}, v{vT0}, 10, v{vO}')
        I(f'v_lshl_add_u32 v{vO}, v{vHF}, 8, v{vO2}')
        I(f'v_lshl_add_u32 v{vO2}, v{vHF}, 30, v{vO2}')
        for j in range(24):
            I(f'v_add_f32 v{O_[j // 12] + j % 12}, v{O_[j // 12] + j % 12}, v{RX + j}')
        vl = [S_[0] + 6, S_[0] + 8]
        for t in range(2):
            I(f'v_mov_b32 v{vl[t]}, v{O_[t] + 8}')
            I(f'v_mov_b32 v{vl[t]+1}, v{O_[t] + 8}')
        for t in range(2):
            I(f'v_permlane32_swap_b32 v{vl[t]}, v{vl[t]+1}')
        I(f's_mov_b32 s16, 0x21800000')
        I(f's_mov_b32 s17, 0x5f800000')
        I(f'v_cmp_le_f32 vcc, s16, v{vl[0]+1}')
        I(f'v_cmp_ge_f32 s[18:19], s17, v{vl[0]+1}')
        I(f's_and_b64 s[{sT+4}:{sT+5}], vcc, s[18:19]')
        I(f'v_cmp_le_f32 vcc, s16, v{vl[1]+1}')
        I(f'v_cmp_ge_f32 s[18:19], s17, v{vl[1]+1}')
        I(f's_and_b64 s[{sT+4}:{sT+5}], s[{sT+4}:{sT+5}], vcc')
        I(f's_and_b64 s[{sT+4}:{sT+5}], s[{sT+4}:{sT+5}], s[18:19]')
        I(f's_cmp_eq_u64 s[{sT+4}:{sT+5}], -1')
        I(f's_cselect_b32 s16, 0, 1')
        if self.dbg.get('forcefb'):
            I('s_mov_b32 s16, 1')
        I(f's_lshl_b32 s17, s{sW}, 2')
        I(f's_add_u32 s17, s17, {L_CK}')
        I(f'v_mov_b32 v{vT0}, s16')
        I(f'v_mov_b32 v{vT1}, s17')
        I(f'ds_write_b32 v{vT1}, v{vT0}')
        for t in range(2):
            I(f'v_rcp_f32 v{vl[t]}, v{vl[t]+1}')
        P.wait(lg=0)
        I('s_barrier')
        I(f'v_mov_b32 v{vT1}, {L_CK}')
        I(f'ds_read_b128 {R(RX,4)}, v{vT1}')
        for t in range(2):
            for r in range(12):
                I(f'v_mul_f32 v{O_[t]+r}, v{O_[t]+r}, v{vl[t]}')
        PK = RX + 4
        for t in range(2):
            for d in range(6):
                I(f'v_cvt_pk_bf16_f32 v{PK+8*t+d}, v{O_[t]+2*d}, v{O_[t]+2*d+1}')
        I(f'v_or3_b32 v{RX}, v{RX}, v{RX+1}, v{RX+2}')
        I(f'v_or_b32 v{RX}, v{RX}, v{RX+3}')
        I(f'v_readfirstlane_b32 s16, v{RX}')
        I(f's_andn2_b32 s16, s16, s{sFB}')
        I(f's_cbranch_scc1 Lfallback')
        for t in range(2):
            I(f'buffer_store_dwordx4 {R(PK+8*t,4)}, v{vO}, {SRD(rA)}, s14 offen offset:{2048*t} sc1', tag='pub')
            I(f'buffer_store_dwordx2 {R(PK+8*t+4,2)}, v{vO2}, {SRD(rA)}, s15 offen offset:{2048*t} sc1', tag='pub')

    def fallback(self):
        P = self.P
        I = P.I
        P.label('Lfallback')
        P.drain()
        MX = O_[0]
        I(f's_mov_b32 s{sFB}, 1')
        for q in range(4):
            I(f'v_mov_b32 v{MX+q}, 0xff800000')
        I(f's_and_b32 s13, s{sW}, 1')
        I(f's_mul_i32 s{sKV}, s13, {16*7168}')
        I(f's_mov_b32 s13, 16')
        P.label('Lfb_loop')
        I(f'buffer_load_dwordx4 {R(K16[0],4)}, v{vL16}, {SRD(rB)}, s{sKV} offen')
        I(f'buffer_load_dwordx4 {R(K16[1],4)}, v{vL16}, {SRD(rB)}, s{sKV} offen offset:1024')
        I(f'buffer_load_dwordx4 {R(K8P[0],4)}, v{vL16}, {SRD(rB)}, s{sKV} offen offset:2048')
        P.wait(vm=0)
        for e in range(2):
            for q in range(4):
                s = S_[q % 2]
                I(MF32(s, K16[e], Q16[q]))
                I(MF8(s, K8P[0] + 2 * e, Q8[q]))
                for r in range(0, 16, 2):
                    I(f'v_max3_f32 v{MX+q}, v{MX+q}, v{s+r}, v{s+r+1}')
        I(f's_add_u32 s{sKV}, s{sKV}, 7168')
        I('s_sub_u32 s13, s13, 1')
        I('s_cmp_lg_u32 s13, 0')
        I('s_cbranch_scc1 Lfb_loop')
        for q in range(4):
            I(f'v_mov_b32 v{MX+4+q}, v{MX+q}')
        for q in range(4):
            I(f'v_permlane32_swap_b32 v{MX+q}, v{MX+4+q}')
        for q in range(4):
            I(f'v_max_f32 v{MX+q}, v{MX+q}, v{MX+4+q}')
        I(f's_lshl_b32 s13, s{sW}, 10')
        I(f's_add_u32 s13, s13, {L_MX}')
        I(f's_xor_b32 s14, s13, 1024')
        I(f'v_add_u32 v{MX+8}, s13, v{vL16}')
        I(f'v_add_u32 v{MX+9}, s14, v{vL16}')
        I(f'ds_write_b128 v{MX+8}, {R(MX,4)}')
        P.wait(lg=0)
        I('s_barrier')
        I(f'ds_read_b128 {R(MX+4,4)}, v{MX+9}')
        I(f'v_cmp_le_u32 vcc, 32, v{vLANE}')
        for q in range(4):
            a, b, c = MX + 12, MX + 13, MX + 14
            I(f'v_max_f32 v{a}, v{MX+q}, v{MX+4+(q^2)}')
            I(f'v_sub_f32 v{a}, 0, v{a}')
            I(f'v_cvt_pk_bf16_f32 v{b}, v{a}, v{a}')
            I(f'v_and_b32 v{b}, 0xffff0000, v{b}')
            I(f'v_sub_f32 v{a}, v{a}, v{b}')
            I(f'v_cvt_pk_bf16_f32 v{c}, v{b}, v{a}')
            I(f'v_and_b32 v{b}, 0xffff0000, v{c}')
            I(f'v_sub_f32 v{a}, v{a}, v{b}')
            I(f'v_cvt_pk_bf16_f32 v{b}, v{a}, 0')
            I(f'v_cndmask_b32 v{Q8[q]}, v{Q8[q]}, v{c}, vcc')
            I(f'v_cndmask_b32 v{Q8[q]+1}, v{Q8[q]+1}, v{b}, vcc')
        P.drain()
        I('s_barrier')
        I('s_branch Lattn_main')
        P.forget()

    def slot_offsets(self, vS):
        P = self.P
        for j in range(4):
            P.I(f's_add_u32 s13, s{sW}, {j}')
            P.I(f's_and_b32 s13, s13, 3')
            P.I(f's_lshl_b32 s13, s13, 10')
            P.I(f'v_add_u32 v{vS+j}, s13, v{vL16}')

    def row_srd(self, r, sptr):
        P = self.P
        P.I(f's_mul_i32 s13, s{sRB}, 81920')
        P.I(f's_mul_i32 s14, s{sHG}, 160')
        P.I(f's_add_u32 s13, s13, s14')
        P.I(f's_sub_u32 s14, 81920, s14')
        srd_off(P, r, sptr, 's13', 's14')

    def row_voff(self, v):
        P = self.P
        P.I(f's_mul_i32 s13, s{sW}, {16*1280}')
        P.I(f'v_and_b32 v{v}, 15, v{vLANE}')
        P.I(f'v_mul_u32_u24 v{v}, 1280, v{v}')
        P.I(f'v_lshrrev_b32 v{vT0}, 4, v{vLANE}')
        P.I(f'v_lshl_add_u32 v{v}, v{vT0}, 3, v{v}')
        P.I(f'v_add_u32 v{v}, s13, v{v}')

    def reduce_and_store(self, ACC, TMP, RES, vR, rOut, flags, keep):
        P = self.P
        I = P.I
        vW = TMP + 60
        for j in range(1, 4):
            I(f's_add_u32 s13, s{sW}, {j}')
            I(f's_and_b32 s13, s13, 3')
            I(f's_mul_i32 s13, s13, 15360')
            I(f's_add_u32 s13, s13, {L_RED + (j-1)*5120}')
            I(f'v_add_u32 v{vW+j}, s13, v{vL16}')
        I(f's_mul_i32 s13, s{sW}, 15360')
        I(f's_add_u32 s13, s13, {L_RED}')
        I(f'v_add_u32 v{vW}, s13, v{vL16}')
        for j in range(1, 4):
            for ct in range(5):
                I(f'ds_write_b128 v{vW+j}, {R(ACC[ct][j],4)} offset:{1024*ct}')
        for ct in range(5):
            for d in range(2):
                I(f'v_lshlrev_b32 v{vT0}, 16, v{RES+2*ct+d}')
                I(f'v_and_b32 v{vT1}, 0xffff0000, v{RES+2*ct+d}')
                I(f'v_add_f32 v{ACC[ct][0]+2*d}, v{ACC[ct][0]+2*d}, v{vT0}')
                I(f'v_add_f32 v{ACC[ct][0]+2*d+1}, v{ACC[ct][0]+2*d+1}, v{vT1}')
        P.wait(lg=0)
        I('s_barrier')
        for ct in range(5):
            for j in range(3):
                I(f'ds_read_b128 {R(TMP + 12*ct + 4*j, 4)}, v{vW} offset:{5120*j + 1024*ct}')
        for ct in range(5):
            a = ACC[ct][0]
            for j in range(3):
                for r in range(4):
                    I(f'v_add_f32 v{a+r}, v{a+r}, v{TMP + 12*ct + 4*j + r}')
            for d in range(2):
                I(f'v_cvt_pk_bf16_f32 v{keep+2*ct+d}, v{a+2*d}, v{a+2*d+1}')
            I(f'buffer_store_dwordx2 {R(keep+2*ct,2)}, v{vR}, {SRD(rOut)}, 0 offen offset:{32*ct}{flags}', tag='pub')

    def wo_stage(self):
        P = self.P
        I = P.I
        ACC = [[8 + 16 * ct + 4 * j for j in range(4)] for ct in range(5)]
        B = [[88 + 16 * k + 4 * j for j in range(4)] for k in range(5)]
        A = [168 + 4 * j for j in range(4)]
        vS = 184
        vA = vT1
        self.signal(0)
        self.stamp(3)
        self.slot_offsets(vS)
        I(f's_mul_i32 s{sRUN}, s{sW}, {5*4096}')
        self.row_srd(rG, sXIN)
        self.poll(0, sMASK8)
        self.stamp(4)
        for k in range(5):
            for j in range(4):
                I(f'buffer_load_dwordx4 {R(B[k][j],4)}, v{vS+j}, {SRD(rA)}, s{sRUN} offen sc1')
            if k < 4:
                I(f's_add_u32 s{sRUN}, s{sRUN}, 4096')
        I(f's_mul_i32 s13, s{sW}, 25600')
        I(f'v_add_u32 v{vA}, s13, v{vL16}')
        rd = lambda f: f'ds_read_b128 {R(A[f % 4],4)}, v{vA} offset:{1024*f}'
        for f in range(3):
            I(rd(f))
        RES, vR = 88, 100
        for k in range(5):
            for ct in range(5):
                f = 5 * k + ct
                if f + 3 < 25:
                    I(rd(f + 3))
                for j in range(4):
                    I(MF16(ACC[ct][j], A[f % 4], B[k][j], k == 0))
            if k == 0:
                vA2 = vS
                I(f'v_mov_b32 v{vA2}, v{vA}')
                vA = vA2
                rd = lambda f: f'ds_read_b128 {R(A[f % 4],4)}, v{vA2} offset:{1024*f}'
                self.row_voff(vR)
                for ct in range(5):
                    I(f'buffer_load_dwordx2 {R(RES+2*ct,2)}, v{vR}, {SRD(rG)}, 0 offen offset:{32*ct}')
        self.stamp(5)
        I(f's_add_u32 s16, s{sLB}, {X1}')
        I(f's_addc_u32 s17, s{sLB+1}, 0')
        self.row_srd(rG, 16)
        self.reduce_and_store(ACC, 104, RES, vR, rG, ' sc1', 172)
        self.X1K = 172

    def ximage_setup(self, vD, vXB, vSB):
        P = self.P
        I = P.I
        I(f's_mul_i32 s13, s{sW}, {16*1280}')
        for i in range(5):
            d = vD + i
            I(f'v_add_u32 v{vT0}, {64*i}, v{vLANE}')
            I(f'v_mul_u32_u24 v{vT1}, 3277, v{vT0}')
            I(f'v_lshrrev_b32 v{vT1}, 16, v{vT1}')
            I(f'v_mul_u32_u24 v{d}, 20, v{vT1}')
            I(f'v_sub_u32 v{vT0}, v{vT0}, v{d}')
            I(f'v_lshrrev_b32 v{d}, 2, v{vT1}')
            I(f'v_xor_b32 v{vT0}, v{vT0}, v{d}')
            I(f'v_mul_u32_u24 v{d}, 1280, v{vT1}')
            I(f'v_lshl_add_u32 v{d}, v{vT0}, 4, v{d}')
            off = -1024 * i if i < 4 else 0
            I(f's_add_i32 s14, s13, {off}')
            I(f'v_add_u32 v{d}, s14, v{d}')
        I(f'v_and_b32 v{vT0}, 31, v{vLANE}')
        I(f'v_bfe_u32 v{vT1}, v{vLANE}, 2, 2')
        I(f'v_lshrrev_b32 v{vXB}, 5, v{vLANE}')
        I(f'v_xor_b32 v{vXB}, v{vXB}, v{vT1}')
        I(f'v_xor_b32 v{vXB+1}, 2, v{vXB}')
        I(f'v_mul_u32_u24 v{vT0}, 320, v{vT0}')
        I(f'v_lshl_add_u32 v{vXB}, v{vXB}, 4, v{vT0}')
        I(f'v_lshl_add_u32 v{vXB+1}, v{vXB+1}, 4, v{vT0}')
        I(f'v_add_u32 v{vXB+2}, 40960, v{vXB}')
        I(f'v_add_u32 v{vXB+3}, 40960, v{vXB+1}')
        I(f'v_lshrrev_b32 v{vT0}, 4, v{vLANE}')
        I(f'v_lshlrev_b32 v{vT0}, 1, v{vT0}')
        I(f'v_mov_b32 v{vSB}, 0x9c')
        I(f'v_lshrrev_b32 v{vT0}, v{vT0}, v{vSB}')
        I(f'v_xor_b32 v{vT0}, v{vT0}, v{vT1}')
        I(f'v_and_b32 v{vT0}, 3, v{vT0}')
        I(f'v_and_b32 v{vSB}, 15, v{vLANE}')
        I(f'v_mul_u32_u24 v{vSB}, 320, v{vSB}')
        I(f'v_lshl_add_u32 v{vSB}, v{vT0}, 4, v{vSB}')
        I(f's_mul_i32 s13, s{sW}, 5120')
        I(f'v_add_u32 v{vSB}, s13, v{vSB}')

    def ximage_dma(self, vD, rX):
        P = self.P
        I = P.I
        I(f's_mul_i32 s13, s{sW}, 5120')
        for c in range(4):
            so = ['0', f's{s320}', f's{s640}', f's{s960}'][c]
            I(f's_add_u32 m0, s13, {c*20480}')
            for i in range(4):
                I(f'buffer_load_dwordx4 v{vD+i}, {SRD(rX)}, {so} offen offset:{1024*i} sc1 lds', tag=f'x{c}')
            I(f's_add_u32 m0, s13, {c*20480+4096}')
            I(f'buffer_load_dwordx4 v{vD+4}, {SRD(rX)}, {so} offen sc1 lds', tag=f'x{c}')

    def xfrag(self, dst, vXB, ks, tt):
        c = ks // 10
        base = vXB + (ks % 2) + (2 if c >= 2 else 0)
        return f'ds_read_b128 {R(dst,4)}, v{base} offset:{(c % 2)*20480 + tt*10240 + ((ks % 10)//2)*64}'

    def stats_chunk(self, c, vSB, SBUF, s1, s2):
        rd = lambda j: f'ds_read_b128 {R(SBUF[j % 2],4)}, v{vSB} offset:{c*20480 + 64*j}'
        out = [rd(0), rd(1)]
        for j in range(5):
            b = SBUF[j % 2]
            for d in range(4):
                out.append(f'v_dot2_f32_bf16 v{s1}, v{b+d}, s{sT+8}, v{s1}')
                out.append(f'v_dot2_f32_bf16 v{s2}, v{b+d}, v{b+d}, v{s2}')
            if j + 2 < 5:
                out.append(rd(j + 2))
        return out

    def stats_final(self, s1, s2, T):
        a, b = T, T + 1
        L = []
        for s in (s1, s2):
            L += [f'v_mov_b32 v{a}, v{s}', f'v_permlane16_swap_b32 v{s}, v{a}', f'v_add_f32 v{s}, v{s}, v{a}',
                  f'v_mov_b32 v{a}, v{s}', f'v_permlane32_swap_b32 v{s}, v{a}', f'v_add_f32 v{s}, v{s}, v{a}']
        G = T + 4
        inv = '0x3acccccd'
        L += [f'v_mul_f32 v{s1}, {inv}, v{s1}',
              f'v_mul_f32 v{s2}, {inv}, v{s2}',
              f'v_fma_f32 v{s2}, -v{s1}, v{s1}, v{s2}',
              f'v_max_f32 v{s2}, 0, v{s2}',
              f'v_add_f32 v{s2}, 0x3727c5ac, v{s2}',
              f'v_rsq_f32 v{a}, v{s2}',
              f'v_sub_f32 v{s1}, 0, v{s1}',
              f'v_mul_f32 v{s2}, v{s2}, v{a}',
              f'v_cvt_pk_bf16_f32 v{G+1}, v{s1}, v{s2}',
              f'v_lshlrev_b32 v{b}, 16, v{G+1}',
              f'v_sub_f32 v{s1}, v{s1}, v{b}',
              f'v_cvt_pk_bf16_f32 v{G}, v{b}, v{s1}',
              f'v_and_b32 v{b}, 0xffff0000, v{G+1}',
              f'v_sub_f32 v{s2}, v{s2}, v{b}',
              f'v_cvt_pk_bf16_f32 v{G+2}, v{s2}, 0',
              f'v_mov_b32 v{G+3}, 0',
              f's_lshl_b32 s13, s{sW}, 4',
              f'v_and_b32 v{b}, 15, v{vLANE}',
              f'v_add_u32 v{b}, s13, v{b}',
              f'v_lshlrev_b32 v{s1}, 4, v{b}',
              f'v_lshlrev_b32 v{b}, 2, v{b}',
              f'v_add_u32 v{s1}, {L_EX}, v{s1}',
              f'v_add_u32 v{b}, {L_RS}, v{b}',
              f'ds_write_b128 v{s1}, {R(G,4)}',
              f'ds_write_b32 v{b}, v{a}']
        return L

    def stats_fetch(self, BX, RS, T):
        L = [f'v_and_b32 v{T}, 31, v{vLANE}', f'v_lshlrev_b32 v{T+1}, 2, v{T}', f'v_lshlrev_b32 v{T}, 4, v{T}',
             f'v_add_u32 v{T}, {L_EX}, v{T}', f'v_add_u32 v{T+1}, {L_RS}, v{T+1}']
        for tt in range(2):
            L.append(f'ds_read_b128 {R(BX[tt],4)}, v{T} offset:{512*tt}')
            L.append(f'ds_read_b32 v{RS[tt]}, v{T+1} offset:{128*tt}')
        return L

    def dual_pass(self, ACC, W, BB, vXB, vSB, SBUF, s1, s2, T, BX, RS, after_k=None):
        P = self.P
        nb = len(BB)
        units = [(ks, tt) for ks in range(40) for tt in range(2)]
        AH = nb - 1
        P.I(f's_mov_b32 s{sT+8}, 0x3f803f80')
        P.I(f'v_mov_b32 v{s1}, 0')
        P.I(f'v_mov_b32 v{s2}, 0')

        def arrive(c):
            return lambda P: (P.wait_tag(f'x{c}'), P.I('s_barrier'))
        side = []
        P.run([arrive(0)])
        for u in range(AH):
            P.I(self.xfrag(BB[u % nb], vXB, *units[u]))
        for u, (ks, tt) in enumerate(units):
            c = ks // 10
            if u % 20 == 0:
                side = side + self.stats_chunk(c, vSB, SBUF, s1, s2)
                if c == 3:
                    side += self.stats_final(s1, s2, T)
            un = u + AH
            if un < len(units):
                if un % 20 == 0:
                    P.run([arrive(un // 20)])
                P.I(self.xfrag(BB[un % nb], vXB, *units[un]))
            P.I(MF32(ACC[tt], W[ks], BB[u % nb], None if ks == 0 else ACC[tt]))
            if tt == 1 and after_k:
                P.run(after_k(ks))
            n = 3 if c < 3 else 5
            P.run(side[:n])
            side = side[n:]
        P.run(side)
        P.wait(lg=0)
        P.I('s_barrier')
        P.run(self.stats_fetch(BX, RS, T))
        for tt in range(2):
            P.I(MF32(ACC[tt], W[40], BX[tt], ACC[tt]))
        if after_k:
            P.run(after_k(40))

    def mish_tile(self, acc, tt, C, T, rOut):
        rl, c1, c2 = C[tt]
        PKB = T + 8
        L = []
        for g in range(4):
            a = acc + 4 * g
            t = T + 4 * (g % 2)
            L += [f'v_mul_f32 v{t+i}, v{a+i}, v{rl}' for i in range(4)]
            L += [f'v_exp_f32 v{t+i}, v{t+i}' for i in range(4)]
            L += [f'v_add_f32 v{t+i}, 1.0, v{t+i}' for i in range(4)]
            L += [f'v_fma_f32 v{t+i}, v{t+i}, v{t+i}, 1.0' for i in range(4)]
            L += [f'v_rcp_f32 v{t+i}, v{t+i}' for i in range(4)]
            L += [f'v_fma_f32 v{t+i}, v{t+i}, v{c2}, v{c1}' for i in range(4)]
            L += [f'v_mul_f32 v{t+i}, v{a+i}, v{t+i}' for i in range(4)]
            p = PKB + 4 * (g // 2) + 2 * (g % 2)
            L += [f'v_cvt_pk_bf16_f32 v{p}, v{t}, v{t+1}', f'v_cvt_pk_bf16_f32 v{p+1}, v{t+2}, v{t+3}']
            if g % 2 == 1:
                L.append((f'buffer_store_dwordx4 {R(PKB + 4*(g//2),4)}, v{self.vH}, {SRD(rOut)}, 0 offen offset:{tt*2048 + (g//2)*512} sc1', 'pub'))
        return L

    def ffn1_stage(self):
        P = self.P
        I = P.I
        ACC = [8, 24, 40, 56]
        BB = [72 + 4 * j for j in range(6)]
        RESK = 96
        vXB, vSB, vD = 106, 110, 111
        SBUF, s1, s2 = [116, 120], 124, 125
        C = [(126, 127, 128), (129, 130, 131)]
        BX = [132, 136]
        T = 140
        self.vH = 164
        self.signal(1)
        self.stamp(6)
        for r in range(10):
            I(f'v_mov_b32 v{RESK+r}, v{self.X1K+r}')
        self.RESK = RESK
        self.ximage_setup(vD, vXB, vSB)
        I(f's_mul_i32 s13, s{sRB}, 81920')
        I(f's_add_u32 s13, s13, {X1}')
        srd_off(P, rA, sLB, 's13', 81920)
        I(f's_mul_i32 s13, s{sRB}, 221184')
        I(f's_lshl_b32 s14, s{sT+2}, 12')
        I(f's_add_u32 s13, s13, s14')
        I(f's_add_u32 s13, s13, {HF}')
        I(f's_min_u32 s14, s{sT}, 4096')
        srd_off(P, rG, sLB, 's13', 's14')
        I(f's_add_u32 s13, s13, 4096')
        I(f's_min_u32 s14, s{sT+1}, 4096')
        srd_off(P, rH, sLB, 's13', 's14')
        I(f's_mul_i32 s13, s{sHG}, 276480')
        I(f's_mul_i32 s14, s{sW}, 71680')
        I(f's_add_u32 s13, s13, s14')
        I(f's_add_u32 s13, s13, {W2F}')
        I(f's_sub_u32 s14, 276480, s14')
        srd_off(P, rE, sWS, 's13', 's14')
        I(f'v_bfe_u32 v{vT0}, v{vLANE}, 4, 1')
        I(f'v_and_b32 v{self.vH}, 15, v{vLANE}')
        I(f'v_lshlrev_b32 v{self.vH}, 4, v{self.vH}')
        I(f'v_lshl_add_u32 v{self.vH}, v{vT0}, 10, v{self.vH}')
        I(f'v_lshrrev_b32 v{vT0}, 5, v{vLANE}')
        I(f'v_lshl_add_u32 v{self.vH}, v{vT0}, 8, v{self.vH}')
        self.poll(1, sMASK1)
        self.stamp(7)
        self.ximage_dma(vD, rA)
        I(fragload(W1B[40], rD, 40))
        for f in range(4):
            I(fragload(W2R[f], rE, f))
        self.dual_pass(ACC[0:2], W1A, BB, vXB, vSB, SBUF, s1, s2, T, BX, [C[0][1], C[1][1]],
                       after_k=lambda k: [fragload(W2R[4 + k], rE, 4 + k)])
        self.stamp(8)
        for tt in range(2):
            rl, c1, c2 = C[tt]
            I(f'v_mul_f32 v{rl}, 0x3fb8aa3b, v{c1}')
            I(f'v_mul_f32 v{c2}, -2.0, v{c1}')
        nb = len(BB)
        units = [(ks, tt) for tt in range(2) for ks in range(40)]
        main = []
        AH = nb - 1
        pre = [self.xfrag(BB[u % nb], vXB, *units[u]) for u in range(AH)]
        for u, (ks, tt) in enumerate(units):
            g = []
            if u + AH < len(units):
                g.append(self.xfrag(BB[(u + AH) % nb], vXB, *units[u + AH]))
            g.append(MF32(ACC[2 + tt], W1B[ks], BB[u % nb], None if ks == 0 else ACC[2 + tt]))
            if tt == 1 and ks < 25:
                g.append(fragload(W2R[45 + ks], rE, 45 + ks))
            main.append(g)
            if ks == 39:
                main.append([MF32(ACC[2 + tt], W1B[40], BX[tt], ACC[2 + tt])])
        e0 = self.mish_tile(ACC[0], 0, C, T, rG)
        e1 = self.mish_tile(ACC[1], 1, C, T, rG)
        e2 = self.mish_tile(ACC[2], 0, C, T, rH)
        e3 = self.mish_tile(ACC[3], 1, C, T, rH)
        n1 = 55
        seq = weave(main[:n1], e0 + e1) + weave(main[n1:], e2)
        P.run(pre)
        P.run(flat(seq))
        self.stamp(9)
        P.run(e3)

    def ffn2_stage(self):
        P = self.P
        I = P.I
        ACC = [[8 + 16 * ct + 4 * j for j in range(4)] for ct in range(5)]
        vS, vR = 88, 92
        self.signal(2)
        self.stamp(10)
        self.slot_offsets(vS)
        self.row_voff(vR)
        I(f's_mul_i32 s13, s{sRB}, 221184')
        I(f's_add_u32 s13, s13, {HF}')
        srd_off(P, rA, sLB, 's13', 221184)
        I(f's_mul_i32 s{sRUN}, s{sW}, {14*4096}')
        self.row_srd(rG, sXOUT)
        self.wq_srd()
        I(f's_cmp_eq_u32 s{sMODE}, 2')
        I(f's_cselect_b32 s{rF+2}, 0, s{rF+2}')
        self.poll(2, sMASK8)
        self.stamp(11)

        def hload(k):
            L = [f'buffer_load_dwordx4 {R(HBUF[4*(k%4)+j],4)}, v{vS+j}, {SRD(rA)}, s{sRUN} offen sc1' for j in range(4)]
            if k < 13:
                L.append(f's_add_u32 s{sRUN}, s{sRUN}, 4096')
            return L
        for k in range(4):
            P.run(hload(k))
        wq = 0
        for k in range(14):
            for ct in range(5):
                for j in range(4):
                    I(MF16(ACC[ct][j], W2R[5 * k + ct], HBUF[4 * (k % 4) + j], k == 0))
            if k + 4 < 14:
                P.run(hload(k + 4))
            else:
                for _ in range(5):
                    I(fragload(WQR[wq], rF, wq))
                    wq += 1
        self.stamp(12)
        self.reduce_and_store(ACC, 108, self.RESK, vR, rG, ' sc1', 8 + 4)
        I(f's_cmp_eq_u32 s{sMODE}, 2')
        I('s_cbranch_scc1 Lfin')
        self.signal(3)
        self.stamp(13)
        while wq < 41:
            I(fragload(WQR[wq], rF, wq))
            wq += 1

    def qkv_stage(self):
        P = self.P
        I = P.I
        ACC = [8, 24]
        BB = [72 + 4 * j for j in range(6)]
        vXB, vSB, vD = 106, 110, 111
        SBUF, s1, s2 = [116, 120], 124, 125
        RS = [126, 127]
        BX = [132, 136]
        T = 140
        self.poll(3, sMASK1)
        P.label('Lqkv')
        P.vm = [parse(fragload(WQR[k], rF, k)) for k in range(41)]
        self.stamp(14)
        self.ximage_setup(vD, vXB, vSB)
        I(f's_mul_i32 s13, s{sRB}, 81920')
        srd_off(P, rA, sXOUT, 's13', 81920)
        self.ximage_dma(vD, rA)
        I(f's_lshl_b32 s13, s{sRB}, 3')
        I(f's_add_u32 s13, s13, s{sHG}')
        I(f's_mul_i32 s13, s13, 12288')
        I(f's_mul_i32 s14, s{sW}, 3072')
        I(f's_add_u32 s13, s13, s14')
        I(f's_add_u32 s13, s13, {QF}')
        srd_off(P, rB, sLBN, 's13', 3072)
        I(f's_mul_i32 s13, s{sRB}, 7168')
        I(f's_add_u32 s13, s13, {KVF}')
        I(f's_cmp_eq_u32 s{sHG}, 0')
        I(f's_cselect_b32 s14, 7168, 0')
        I(f's_cmp_lt_u32 s{sW}, 3')
        I(f's_cselect_b32 s14, s14, 0')
        srd_off(P, rC, sLBN, 's13', 's14')
        I(f's_cmp_eq_u32 s{sHG}, 1')
        I(f's_cselect_b32 s14, 7168, 0')
        srd_off(P, rD, sLBN, 's13', 's14')
        self.dual_pass(ACC, WQR, BB, vXB, vSB, SBUF, s1, s2, T, BX, RS)
        self.stamp(15)
        qs = 20 ** -0.5 * math.log2(math.e)
        import struct
        qsb = struct.unpack('<I', struct.pack('<f', qs))[0]
        vC0, vC1, vVW, vVR, vVS, vL8 = 40, 41, 42, 43, 44, 45
        SC = [46, 47]
        for tt in range(2):
            I(f'v_mul_f32 v{SC[tt]}, {qsb:#x}, v{RS[tt]}')
        I(f's_mov_b32 s15, 0x3f80')
        I(f's_mov_b32 s16, 0x3f803f80')
        I(f's_cmp_eq_u32 s{sHG}, 0')
        I(f's_cselect_b32 s16, s16, s15')
        I(f's_cselect_b32 s15, s15, 0')
        I(f'v_mov_b32 v{vC0}, s16')
        I(f'v_mov_b32 v{vC1}, s15')
        I(f's_cmp_eq_u32 s{sW}, 2')
        I(f's_cselect_b32 vcc_hi, -1, 0')
        I(f's_mov_b32 vcc_lo, 0')
        I(f's_lshl_b32 s15, s{sW}, 3')
        I(f's_add_u32 s16, s15, 1024')
        I(f's_cmp_eq_u32 s{sW}, 2')
        I(f's_cselect_b32 s15, 2048, s15')
        I(f's_cselect_b32 s16, 2056, s16')
        I(f's_lshl_b32 s17, s{sW}, 11')
        I(f's_add_u32 s17, s17, {L_VT}')
        I(f'v_lshrrev_b32 v{vT0}, 5, v{vLANE}')
        I(f'v_mul_u32_u24 v{vT0}, {4*144}, v{vT0}')
        I(f'v_and_b32 v{vT1}, 31, v{vLANE}')
        I(f'v_lshl_add_u32 v{vVW}, v{vT1}, 1, v{vT0}')
        I(f'v_add_u32 v{vVW}, s17, v{vVW}')
        I(f'v_and_b32 v{vT0}, 7, v{vLANE}')
        I(f'v_lshrrev_b32 v{vT1}, 3, v{vLANE}')
        I(f'v_mul_u32_u24 v{vVR}, 144, v{vT0}')
        I(f'v_lshl_add_u32 v{vVR}, v{vT1}, 4, v{vVR}')
        I(f'v_add_u32 v{vVR}, s17, v{vVR}')
        I(f'v_lshlrev_b32 v{vVS}, 9, v{vT1}')
        I(f'v_lshl_add_u32 v{vVS}, v{vT0}, 4, v{vVS}')
        I(f'v_lshlrev_b32 v{vL8}, 3, v{vLANE}')
        I(f's_lshl_b32 s18, s{sW}, 7')
        PK = 48
        for tt in range(2):
            a = ACC[tt]
            p = PK + 8 * tt
            for r in range(12, 16):
                I(f'v_mul_f32 v{a+r}, v{a+r}, v{RS[tt]}')
            for d in range(2):
                I(f'v_cvt_pk_bf16_f32 v{p+6+d}, v{a+12+2*d}, v{a+13+2*d}')
            I(f'v_cndmask_b32 v{p+6}, v{p+6}, v{vC0}, vcc')
            I(f'v_cndmask_b32 v{p+7}, v{p+7}, v{vC1}, vcc')
            I(f'buffer_store_dwordx2 {R(p+6,2)}, v{vL16}, {SRD(rC)}, s{15+tt} offen')
            I(f'ds_write_b16 v{vVW}, v{p+6} offset:{64*tt}')
            I(f'ds_write_b16_d16_hi v{vVW}, v{p+6} offset:{64*tt+144}')
            I(f'ds_write_b16 v{vVW}, v{p+7} offset:{64*tt+288}')
            I(f'ds_write_b16_d16_hi v{vVW}, v{p+7} offset:{64*tt+432}')
        I(f'ds_read_b128 {R(64,4)}, v{vVR}')
        for tt in range(2):
            a = ACC[tt]
            p = PK + 8 * tt
            for r in range(12):
                I(f'v_mul_f32 v{a+r}, v{a+r}, v{SC[tt]}')
            for d in range(6):
                I(f'v_cvt_pk_bf16_f32 v{p+d}, v{a+2*d}, v{a+2*d+1}')
            I(f'buffer_store_dwordx4 {R(p,4)}, v{vL16}, {SRD(rB)}, 0 offen offset:{1536*tt}')
            I(f'buffer_store_dwordx2 {R(p+4,2)}, v{vL8}, {SRD(rB)}, 0 offen offset:{1536*tt+1024}')
        I(f'buffer_store_dwordx4 {R(64,4)}, v{vVS}, {SRD(rD)}, s18 offen offset:3072')
        P.label('Lfin')
        self.stamp(16)
        P.label('Lend')
        I('s_endpgm')
        P.forget()

    def build(self):
        self.prologue()
        self.attention()
        self.wo_stage()
        self.ffn1_stage()
        self.ffn2_stage()
        self.qkv_stage()
        self.fallback()
```

```python
from asmlib import *
from layout import *

OOB = 0x40000000

def srd(P, d, blo, bhi, nrec):
    if d != blo:
        P.I(f's_mov_b32 s{d}, s{blo}')
        P.I(f's_mov_b32 s{d+1}, s{bhi}')
    P.I(f's_mov_b32 s{d+2}, {nrec}')
    P.I(f's_mov_b32 s{d+3}, 0x20000')

def srd_off(P, d, blo, off, nrec):
    P.I(f's_add_u32 s{d}, s{blo}, {off}')
    P.I(f's_addc_u32 s{d+1}, s{blo+1}, 0')
    P.I(f's_mov_b32 s{d+2}, {nrec}')
    P.I(f's_mov_b32 s{d+3}, 0x20000')

def gen_prep(P, code_start, code_bytes):
    I = P.I
    P.raw('.p2align 8')
    P.raw('prep_kernel:')
    I('s_cmp_ge_u32 s2, 256')
    I('s_cbranch_scc1 Lp_end')
    I('s_load_dwordx4 s[4:7], s[0:1], 0')
    I('s_load_dwordx4 s[8:11], s[0:1], 16')
    I('s_load_dwordx2 s[12:13], s[0:1], 32')
    I('s_load_dwordx4 s[16:19], s[0:1], 48')
    I('s_load_dwordx2 s[14:15], s[0:1], 64')
    I('s_load_dwordx2 s[20:21], s[0:1], 88')
    I('v_lshrrev_b32 v1, 6, v0')
    I('v_and_b32 v2, 63, v0')
    I('v_readfirstlane_b32 s22, v1')
    I('v_lshlrev_b32 v3, 4, v2')
    I('v_lshlrev_b32 v4, 4, v0')
    P.wait(lg=0)
    srd(P, 24, 20, 21, 0x1000000)
    I('s_cmp_lt_u32 s2, 86')
    I('s_cbranch_scc1 Lp_t1')
    I('s_cmp_lt_u32 s2, 234')
    I('s_cbranch_scc1 Lp_t2')
    I('s_sub_u32 s23, s2, 234')
    I('s_cmp_ge_u32 s23, 8')
    I('s_cbranch_scc1 Lp_warm')
    I('s_lshl_b32 s23, s23, 12')
    I(f's_add_u32 s23, s23, {FLG}')
    for r in range(8, 12):
        I(f'v_mov_b32 v{r}, 0')
    I('buffer_store_dwordx4 v[8:11], v4, s[24:27], s23 offen')
    I('s_branch Lp_warm')
    P.forget()
    P.label('Lp_t2')
    I('v_and_b32 v5, 15, v2')
    I('v_lshrrev_b32 v6, 4, v2')
    I('s_cmp_lt_u32 s2, 194')
    I('s_cbranch_scc0 Lp_wo')
    I('s_sub_u32 s23, s2, 86')
    I('s_lshl_b32 s23, s23, 2')
    I('s_add_u32 s23, s23, s22')
    I('s_mul_i32 s36, s23, 1214')
    I('s_lshr_b32 s36, s36, 16')
    I('s_mul_i32 s37, s36, 54')
    I('s_sub_u32 s37, s23, s37')
    I('s_mul_i32 s38, s23, 5120')
    I(f's_add_u32 s38, s38, {W2F}')
    srd(P, 28, 14, 15, 1728 * 1280)
    I('s_lshl_b32 s37, s37, 5')
    I('v_lshrrev_b32 v7, 1, v6')
    I('v_lshlrev_b32 v7, 4, v7')
    I('v_and_b32 v8, 1, v6')
    I('v_lshl_add_u32 v7, v8, 2, v7')
    I('v_add_u32 v7, s37, v7')
    I('v_mov_b32 v8, 8')
    I('s_branch Lp_t2go')
    P.label('Lp_wo')
    I('s_sub_u32 s23, s2, 194')
    I('s_lshl_b32 s23, s23, 2')
    I('s_add_u32 s23, s23, s22')
    I('s_mul_i32 s36, s23, 3277')
    I('s_lshr_b32 s36, s36, 16')
    I('s_mul_i32 s37, s36, 20')
    I('s_sub_u32 s37, s23, s37')
    I('s_mul_i32 s38, s23, 5120')
    I(f's_add_u32 s38, s38, {WOF}')
    srd(P, 28, 12, 13, 640 * 1280)
    I('s_mul_i32 s39, s37, 52')
    I('s_lshr_b32 s39, s39, 8')
    I('s_mul_i32 s40, s39, 5')
    I('s_sub_u32 s40, s37, s40')
    I('s_lshl_b32 s40, s40, 2')
    I('s_mul_i32 s39, s39, 160')
    I('v_add_u32 v9, s40, v6')
    I('v_cmp_le_u32 vcc, 10, v9')
    I('v_mov_b32 v10, 10')
    I('v_mov_b32 v12, 80')
    I('v_cndmask_b32 v10, 0, v10, vcc')
    I('v_cndmask_b32 v12, 0, v12, vcc')
    I('v_sub_u32 v9, v9, v10')
    I('v_lshrrev_b32 v10, 1, v9')
    I('v_mul_u32_u24 v10, 20, v10')
    I('v_and_b32 v11, 1, v9')
    I('v_lshl_add_u32 v10, v11, 2, v10')
    I('v_subrev_u32 v11, 8, v9')
    I('v_mul_u32_u24 v11, 40, v11')
    I('v_add_u32 v11, 16, v11')
    I('v_cmp_le_u32 vcc, 8, v9')
    I('v_mov_b32 v8, 8')
    I('v_mov_b32 v13, 20')
    I('v_cndmask_b32 v7, v10, v11, vcc')
    I('v_cndmask_b32 v8, v8, v13, vcc')
    I('v_add_u32 v7, v7, v12')
    I('v_add_u32 v7, s39, v7')
    P.label('Lp_t2go')
    I('s_mul_i32 s36, s36, 160')
    I('s_movk_i32 s41, 1280')
    I('v_mul_lo_u32 v7, v7, s41')
    I('v_mul_lo_u32 v8, v8, s41')
    I('v_lshl_add_u32 v7, v5, 1, v7')
    I('v_add_u32 v8, v7, v8')
    for t in range(8):
        I(f'v_add_u32 v{16+t}, {1280*(t%4)}, v{7 if t < 4 else 8}')
    for ct in range(5):
        for t in range(8):
            I(f'buffer_load_ushort v{32+8*ct+t}, v{16+t}, s[28:31], s36 offen offset:{32*ct}')
    for ct in range(5):
        for d in range(4):
            I(f'v_lshl_or_b32 v{80+4*ct+d}, v{32+8*ct+2*d+1}, 16, v{32+8*ct+2*d}')
        if ct < 4:
            I(f'buffer_store_dwordx4 v[{80+4*ct}:{83+4*ct}], v3, s[24:27], s38 offen offset:{1024*ct}')
        else:
            I('s_add_u32 s38, s38, 4096')
            I(f'buffer_store_dwordx4 v[{80+4*ct}:{83+4*ct}], v3, s[24:27], s38 offen')
    I('s_branch Lp_warm')
    P.forget()
    P.label('Lp_t1')
    I('v_and_b32 v5, 31, v2')
    I('v_lshrrev_b32 v6, 5, v2')
    I('s_mul_i32 s42, s22, 160')
    I('v_lshl_add_u32 v7, v6, 3, s42')
    I('s_cmp_lt_u32 s2, 54')
    I('s_cbranch_scc0 Lp_wq')
    I('s_mov_b32 s41, 3456')
    I('s_lshl_b32 s36, s2, 6')
    I(f's_mul_i32 s38, s2, {TILE}')
    I(f's_add_u32 s38, s38, {W1F}')
    srd(P, 28, 16, 17, 640 * 3456)
    srd(P, 32, 18, 19, 3456)
    I('v_lshlrev_b32 v9, 1, v5')
    I('s_mov_b32 s43, 2')
    I('s_branch Lp_t1go')
    P.label('Lp_wq')
    I('s_sub_u32 s23, s2, 54')
    I('s_movk_i32 s41, 1280')
    I('s_mul_i32 s36, s23, 40')
    I(f's_mul_i32 s38, s23, {TILE}')
    I(f's_add_u32 s38, s38, {WQF}')
    srd(P, 28, 6, 7, 640 * 1280)
    srd(P, 32, 18, 19, 0)
    I('v_lshlrev_b32 v9, 1, v5')
    I(f'v_mov_b32 v10, {OOB}')
    I('v_cmp_gt_u32 vcc, 20, v5')
    I('s_lshr_b32 s43, s23, 2')
    I('s_and_b32 s44, s23, 3')
    I('v_cndmask_b32 v9, v10, v9, vcc')
    P.label('Lp_t1go')
    I('v_mul_lo_u32 v8, v7, s41')
    I('v_add_u32 v8, v8, v9')
    I('v_lshlrev_b32 v30, 1, v5')
    I('buffer_load_ushort v31, v30, s[32:35], s36 offen')
    I('v_mov_b32 v16, v8')
    for t in range(1, 8):
        I(f'v_add_u32 v{16+t}, s41, v{15+t}')
    I('s_lshl_b32 s45, s41, 4')
    I('s_mov_b32 s46, s36')
    for k in range(10):
        for t in range(8):
            I(f'buffer_load_ushort v{40+8*k+t}, v{16+t}, s[28:31], s46 offen')
        if k < 9:
            I('s_add_u32 s46, s46, s45')
    I('s_cmp_ge_u32 s43, 2')
    I('s_cbranch_scc1 Lp_nokv')
    I('s_cmp_eq_u32 s43, 0')
    I('s_cselect_b32 s48, s8, s10')
    I('s_cselect_b32 s49, s9, s11')
    I('s_mov_b32 s50, 25600')
    I('s_mov_b32 s51, 0x20000')
    I('s_lshl_b32 s44, s44, 3')
    I('v_subrev_u32 v10, 24, v5')
    I('v_add_u32 v10, s44, v10')
    I('v_cmp_le_u32 vcc, 24, v5')
    I('v_cmp_gt_u32 s[52:53], 20, v10')
    I('v_mul_u32_u24 v11, 40, v7')
    I('v_lshl_add_u32 v11, v10, 1, v11')
    I('s_and_b64 s[52:53], s[52:53], vcc')
    I('s_mov_b64 exec, s[52:53]')
    I('s_cbranch_execz Lp_kvdone')
    I('s_mov_b32 s46, 0')
    for k in range(10):
        for t in range(8):
            P.I(f'buffer_load_ushort v{40+8*k+t}, v11, s[48:51], s46 offen offset:{40*t}', nowaw=True)
        if k < 9:
            I('s_add_u32 s46, s46, 640')
    P.label('Lp_kvdone')
    I('s_mov_b64 exec, -1')
    P.label('Lp_nokv')
    P.drain()
    I('v_mov_b32 v12, 0')
    I('s_mov_b32 s47, 0x3f803f80')
    I('s_mul_i32 s46, s22, 10240')
    I('s_add_u32 s46, s46, s38')
    for k in range(10):
        b = 120 + 4 * (k % 2)
        for d in range(4):
            I(f'v_lshl_or_b32 v{b+d}, v{40+8*k+2*d+1}, 16, v{40+8*k+2*d}')
        for d in range(4):
            I(f'v_dot2_f32_bf16 v12, v{b+d}, s47, v12')
        I(f'buffer_store_dwordx4 v[{b}:{b+3}], v3, s[24:27], s46 offen offset:{1024*(k%4)}')
        if k % 4 == 3:
            I('s_add_u32 s46, s46, 4096')
    I('v_mov_b32 v13, v12')
    I('v_permlane32_swap_b32 v12, v13')
    I('v_add_f32 v12, v12, v13')
    I('s_lshl_b32 s46, s22, 7')
    I('v_lshl_add_u32 v14, v5, 2, s46')
    I('ds_write_b32 v14, v12')
    P.wait(lg=0)
    I('s_barrier')
    I('s_cmp_lg_u32 s22, 0')
    I('s_cbranch_scc1 Lp_warm')
    I('v_lshlrev_b32 v14, 2, v5')
    I('ds_read_b32 v16, v14')
    I('ds_read_b32 v17, v14 offset:128')
    I('ds_read_b32 v18, v14 offset:256')
    I('ds_read_b32 v19, v14 offset:384')
    I('v_add_f32 v16, v16, v17')
    I('v_add_f32 v18, v18, v19')
    I('v_add_f32 v16, v16, v18')
    I('v_cvt_pk_bf16_f32 v20, v16, v16')
    I('v_and_b32 v17, 0xffff0000, v20')
    I('v_sub_f32 v17, v16, v17')
    I('v_cvt_pk_bf16_f32 v17, v17, v17')
    I('v_and_b32 v17, 0xffff, v17')
    I('v_lshl_or_b32 v21, v31, 16, v17')
    I('v_mov_b32 v22, v31')
    I('v_mov_b32 v23, 0')
    I('v_cmp_eq_u32 vcc, 0, v6')
    I(f's_add_u32 s38, s38, {40*1024}')
    I('v_cndmask_b32 v20, 0, v20, vcc')
    I('v_cndmask_b32 v21, 0, v21, vcc')
    I('v_cndmask_b32 v22, 0, v22, vcc')
    I('buffer_store_dwordx4 v[20:23], v3, s[24:27], s38 offen')
    P.forget()
    P.label('Lp_warm')
    I('s_and_b32 s36, s2, 7')
    I('s_lshl_b32 s36, s36, 5')
    I('s_lshr_b32 s37, s2, 3')
    I('s_add_u32 s36, s36, s37')
    I('s_mul_i32 s36, s36, 10240')
    srd_off(P, 28, 4, 's36', 10240)
    I('buffer_load_dwordx4 v[32:35], v4, s[28:31], 0 offen')
    I('v_add_u32 v5, 4096, v4')
    I('buffer_load_dwordx4 v[36:39], v5, s[28:31], 0 offen')
    I('v_add_u32 v5, 8192, v4')
    I('buffer_load_dwordx4 v[40:43], v5, s[28:31], 0 offen')
    if code_start:
        I('s_getpc_b64 s[32:33]')
        P.label('Lp_pc')
        I(f's_add_u32 s32, s32, {code_start}-Lp_pc')
        I('s_addc_u32 s33, s33, 0')
        I(f's_mov_b32 s34, {code_bytes}')
        I('s_mov_b32 s35, 0x20000')
        I('s_lshl_b32 s37, s37, 12')
        I('buffer_load_dwordx4 v[44:47], v4, s[32:35], s37 offen')
    P.label('Lp_end')
    I('s_endpgm')
    P.forget()
```

```python
import sys, os
sys.path.insert(0, os.path.dirname(os.path.abspath(__file__)))
from asmlib import *
from layout import *
from prep import gen_prep
from main import Gen

NAME = 'interleave_layers__grouped_kv_mqa__dense_activation_mish__prompt'

def kd(name, vgpr, accum):
    return f'''.p2align 6
.amdhsa_kernel {name}
  .amdhsa_next_free_vgpr {vgpr}
  .amdhsa_next_free_sgpr 102
  .amdhsa_accum_offset {accum}
  .amdhsa_group_segment_fixed_size 0
  .amdhsa_kernarg_size 96
  .amdhsa_user_sgpr_count 2
  .amdhsa_user_sgpr_kernarg_segment_ptr 1
  .amdhsa_system_sgpr_workgroup_id_x 1
.end_amdhsa_kernel
'''

def build(dbg=None):
    ref = open(f'cdna_kernels/{NAME}.s.ref').read().splitlines() if os.path.exists(f'cdna_kernels/{NAME}.s.ref') else []
    hdr = [l for l in ref if l.startswith(';   offset') or l.startswith('; Kernarg')]
    hdr += ['; Generated by my own generator (gen/*.py): weight re-layout, QKV, then one fused launch per layer.',
            '; @launch kernel=prep_kernel grid=(256,1,1) block=(256,1,1) lds=512',
            f'; @launch kernel=qkv_kernel grid=(256,1,1) block=(256,1,1) lds={LDS_BYTES}',
            f'; @launch kernel=layer1_kernel grid=(256,1,1) block=(256,1,1) lds={LDS_BYTES}',
            f'; @launch kernel=layer2_kernel grid=(256,1,1) block=(256,1,1) lds={LDS_BYTES}']
    P = Prog()
    gen_prep(P, 'layer2_kernel', 'Lcode_end-layer2_kernel')
    g = Gen(P, dbg)
    g.build()
    P.label('Lcode_end')
    out = '\n'.join(hdr) + '\n.amdgcn_target "amdgcn-amd-amdhsa--gfx950"\n.text\n'
    for k in ('prep_kernel', 'qkv_kernel', 'layer1_kernel', 'layer2_kernel'):
        out += f'.globl {k}\n.type {k},@function\n'
    out += P.text()
    out += '.section .rodata,"a"\n' + kd('prep_kernel', 128, 128)
    for k in ('qkv_kernel', 'layer1_kernel', 'layer2_kernel'):
        out += kd(k, 512, 256)
    return out, P

if __name__ == '__main__':
    dbg = {a: True for a in sys.argv[2:]}
    out, P = build(dbg)
    path = sys.argv[1] if len(sys.argv) > 1 else f'cdna_kernels/{NAME}.s'
    open(path, 'w').write(out)
    print('wrote', path, len(out), 'bytes; nops', P.nnop, P.count)
```

```python
import re

VB, AB, SB = 0, 256, 1000
VCC = (SB + 106, SB + 107)
EXEC = (SB + 126, SB + 127)
M0 = SB + 124
SCC = SB + 200

_reg_re = re.compile(r'^(-?)(abs\()?\|?([vas])(\d+|\[(\d+):(\d+)\])\)?\|?$')


def regs_of(tok):
    tok = tok.strip()
    if tok == 'vcc':
        return list(VCC)
    if tok == 'vcc_lo':
        return [VCC[0]]
    if tok == 'vcc_hi':
        return [VCC[1]]
    if tok == 'exec':
        return list(EXEC)
    if tok == 'exec_lo':
        return [EXEC[0]]
    if tok == 'exec_hi':
        return [EXEC[1]]
    if tok == 'm0':
        return [M0]
    m = _reg_re.match(tok)
    if not m:
        return []
    base = {'v': VB, 'a': AB, 's': SB}[m.group(3)]
    if m.group(5) is not None:
        return list(range(base + int(m.group(5)), base + int(m.group(6)) + 1))
    return [base + int(m.group(4))]


def R(base, n=1):
    k, i = ('v', base) if base < 256 else ('a', base - 256)
    assert i + n <= 256, (base, n)
    return f"{k}{i}" if n == 1 else f"{k}[{i}:{i + n - 1}]"


def S(i, n=1):
    return f"s{i}" if n == 1 else f"s[{i}:{i + n - 1}]"


TRANS = ('v_exp_f32', 'v_log_f32', 'v_rcp_f32', 'v_rsq_f32', 'v_sqrt_f32', 'v_sin_f32', 'v_cos_f32')
NODST_S = ('s_cmp', 's_cbranch', 's_branch', 's_barrier', 's_waitcnt', 's_nop', 's_setprio', 's_sleep', 's_endpgm',
           's_bitcmp', 's_setpc')


class Ins:
    __slots__ = ('text', 'op', 'cls', 'rd', 'wr', 'passes', 'srcC', 'srcAB', 'ws', 'wide', 'dpp', 'perm', 'lane',
                 'isload', 'isstore', 'dma', 'tag', 'trans', 'data')


def parse(text):
    t = text.split(';')[0].strip()
    i = Ins()
    i.text = text
    sp = t.split(None, 1)
    op = sp[0]
    i.op = op
    rest = sp[1] if len(sp) > 1 else ''
    ops = [x.strip() for x in rest.split(',')] if rest else []
    mods = ''
    if ops:
        last = ops[-1].split(None, 1)
        if len(last) > 1:
            ops[-1] = last[0]
            mods = last[1]
    i.rd, i.wr = set(), set()
    i.passes = 0
    i.srcC, i.srcAB = set(), set()
    i.ws = 1
    i.wide = i.dpp = i.perm = i.lane = i.isload = i.isstore = i.dma = i.trans = False
    i.tag = None
    i.data = set()
    rg = [regs_of(o) for o in ops]
    if op.startswith('v_mfma') or op.startswith('v_smfmac'):
        i.cls = 'mfma'
        i.passes = 4 if '16x16' in op else 8
        i.wr = set(rg[0])
        i.srcAB = set(rg[1]) | set(rg[2])
        if op.startswith('v_smfmac'):
            i.srcC = set(rg[0])
            i.srcAB |= set(rg[3])
        else:
            i.srcC = set(rg[3])
        i.rd = i.srcAB | i.srcC
    elif op.startswith('v_'):
        i.cls = 'valu'
        base = op.replace('_e32', '').replace('_e64', '').replace('_dpp', '').replace('_sdwa', '')
        i.trans = base in TRANS
        i.wr = set(rg[0])
        srcs = rg[1:]
        if re.match(r'v_(add|sub|subrev|addc|subb|subbrev)_co_', base):
            i.wr |= set(rg[1])
            srcs = rg[2:]
        for r in srcs:
            i.rd |= set(r)
        if base.startswith('v_fmac') or base.startswith('v_dot2c') or base.startswith('v_permlane') or base == 'v_swap_b32' \
                or base.startswith('v_writelane') or base.startswith('v_pk_fmac'):
            i.rd |= set(rg[0])
        if base.startswith('v_permlane') or base == 'v_swap_b32':
            i.wr |= set(rg[1])
        if base.startswith('v_permlane'):
            i.perm = True
        if 'row_' in mods or 'quad_perm' in mods or 'wave_' in mods:
            i.dpp = True
            i.rd |= set(rg[0])
        if base.startswith('v_readfirstlane') or base.startswith('v_readlane'):
            i.lane = True
        if base.startswith('v_cmpx'):
            raise Exception('avoid v_cmpx')
        i.rd |= set(EXEC)
    elif op.startswith('buffer_') or op.startswith('global_'):
        i.cls = 'vmem'
        allm = mods.split()
        if op in ('buffer_wbl2', 'buffer_inv'):
            i.isstore = True
        elif op.startswith('buffer_load'):
            if 'lds' in allm:
                i.dma = True
                for r in rg:
                    i.rd |= set(r)
                i.rd.add(M0)
            else:
                i.isload = True
                i.wr = set(rg[0])
                for r in rg[1:]:
                    i.rd |= set(r)
        elif op.startswith('buffer_store') or op.startswith('buffer_atomic'):
            i.isstore = True
            i.data = set(rg[0])
            for r in rg:
                i.rd |= set(r)
            i.wide = len(rg[0]) >= 3
        elif op.startswith('global_load'):
            i.isload = True
            i.wr = set(rg[0])
            for r in rg[1:]:
                i.rd |= set(r)
        elif op.startswith('global_store') or op.startswith('global_atomic'):
            i.isstore = True
            i.data = set(rg[1])
            for r in rg:
                i.rd |= set(r)
            i.wide = len(rg[1]) >= 3
        else:
            raise Exception(text)
    elif op.startswith('ds_'):
        i.cls = 'lds'
        if op.startswith('ds_read') or op.startswith('ds_bpermute') or op.startswith('ds_swizzle'):
            i.isload = True
            i.wr = set(rg[0])
            for r in rg[1:]:
                i.rd |= set(r)
        else:
            i.isstore = True
            for r in rg:
                i.rd |= set(r)
    elif op.startswith('s_load') or op.startswith('s_memtime') or op.startswith('s_memrealtime'):
        i.cls = 'smem'
        i.isload = True
        i.wr = set(rg[0])
        for r in rg[1:]:
            i.rd |= set(r)
    elif op.startswith('s_'):
        i.cls = 'salu'
        if any(op.startswith(p) for p in NODST_S):
            for r in rg:
                i.rd |= set(r)
            if op == 's_nop':
                i.ws = int(ops[0], 0) + 1
        else:
            i.wr = set(rg[0])
            for r in rg[1:]:
                i.rd |= set(r)
            if 'saveexec' in op:
                i.wr |= set(EXEC)
    else:
        raise Exception('unknown ' + text)
    return i


MF_VALU = {4: 8, 8: 12}
MF_COVL = {4: 6, 8: 10}
MF_WARC = {4: 3, 8: 7}


class Prog:
    def __init__(self):
        self.out = []
        self.vm = []
        self.lg = []
        self.hist = []
        self.pos = 0
        self.nnop = 0
        self.count = {}

    def raw(self, text):
        self.out.append(text)

    def comment(self, text):
        self.out.append('; ' + text)

    def label(self, name):
        self.out.append(name + ':')

    def _issue(self, ins):
        self.out.append('  ' + ins.text)
        self.hist.append((ins, self.pos))
        self.pos += ins.ws
        if len(self.hist) > 40:
            self.hist.pop(0)
        self.count[ins.cls] = self.count.get(ins.cls, 0) + 1

    def _wait(self, vm=None, lg=None):
        parts = []
        if vm is not None and vm < len(self.vm):
            vm = min(vm, 63)
            parts.append(f'vmcnt({vm})')
            self.vm = self.vm[len(self.vm) - vm:] if vm > 0 else []
        if lg is not None and lg < len(self.lg):
            if any(e.cls == 'smem' for e in self.lg):
                lg = 0
            lg = min(lg, 15)
            parts.append(f'lgkmcnt({lg})')
            self.lg = self.lg[len(self.lg) - lg:] if lg > 0 else []
        if parts:
            self._issue(parse('s_waitcnt ' + ' '.join(parts)))

    def wait(self, vm=None, lg=None):
        self._wait(vm, lg)

    def wait_tag(self, tag):
        idx = [k for k, e in enumerate(self.vm) if e.tag == tag]
        if idx:
            self._wait(vm=len(self.vm) - 1 - max(idx))

    def need(self, base, n):
        regs = set(range(base, base + n))
        nv = nl = None
        for k, e in enumerate(self.vm):
            if e.isload and (e.wr & regs):
                nv = len(self.vm) - 1 - k
        for k, e in enumerate(self.lg):
            if e.isload and (e.wr & regs):
                nl = len(self.lg) - 1 - k
        self._wait(nv, nl)

    def forget(self):
        self.vm, self.lg = [], []

    def drain(self):
        self._issue(parse('s_waitcnt vmcnt(0) lgkmcnt(0)'))
        self.forget()

    def I(self, text, tag=None, nowaw=False):
        ins = parse(text)
        ins.tag = tag
        touch = ins.rd | ins.wr
        need_vm = need_lg = None
        for k, e in enumerate(self.vm):
            if e.isload and (e.wr & (ins.rd if (nowaw and ins.cls == 'vmem') else touch)):
                need_vm = len(self.vm) - 1 - k
        for k, e in enumerate(self.lg):
            if e.isload and (e.wr & touch):
                need_lg = len(self.lg) - 1 - k
        if need_vm is not None or need_lg is not None:
            self._wait(need_vm, need_lg)
        need = 0
        for (p, at) in self.hist:
            dist = self.pos - at - p.ws
            req = 0
            if p.cls == 'valu':
                vw = {r for r in p.wr if r < SB}
                sw = {r for r in p.wr if r >= SB}
                if ins.cls == 'mfma' and (vw & ins.rd):
                    req = max(req, 2)
                if ins.cls == 'valu':
                    if p.trans and not ins.trans and (vw & ins.rd):
                        req = max(req, 1)
                    if (ins.perm or ins.dpp) and (vw & ins.rd):
                        req = max(req, 2)
                    if ins.lane and (vw & ins.rd):
                        req = max(req, 1)
                    if sw & ins.rd:
                        req = max(req, 4 if ins.lane or ins.op.startswith('v_div_fmas') else 2)
                if p.trans and ins.cls in ('vmem', 'lds') and (vw & ins.rd):
                    req = max(req, 1)
                if ins.cls == 'vmem' and (sw & ins.rd):
                    req = max(req, 5)
                if ins.cls in ('salu', 'smem') and (sw & ins.rd):
                    req = max(req, 1)
            elif p.cls == 'mfma':
                if ins.cls == 'mfma':
                    if p.wr & ins.srcAB:
                        req = max(req, MF_VALU[p.passes])
                    if p.wr & ins.srcC:
                        if not (p.wr == ins.srcC and p.passes == ins.passes):
                            req = max(req, MF_COVL[p.passes])
                    elif (p.wr & ins.wr) and not (p.wr == ins.wr and p.passes == ins.passes):
                        req = max(req, MF_COVL[p.passes])
                elif ins.cls == 'valu':
                    if p.wr & (ins.rd | ins.wr):
                        req = max(req, MF_VALU[p.passes])
                    if p.srcC & ins.wr:
                        req = max(req, MF_WARC[p.passes])
                elif ins.cls in ('vmem', 'lds'):
                    if p.wr & (ins.rd | ins.wr):
                        req = max(req, MF_VALU[p.passes])
                    if p.srcC & ins.wr:
                        req = max(req, MF_WARC[p.passes])
            elif p.cls == 'salu':
                if M0 in p.wr and ins.dma:
                    req = max(req, 1)
            elif p.cls == 'vmem':
                if p.wide and (p.data & ins.wr):
                    req = max(req, 2)
            need = max(need, req - dist)
        while need > 0:
            n = min(need, 16)
            self._issue(parse(f's_nop {n - 1}'))
            self.nnop += 1
            need -= n
        self._issue(ins)
        if ins.cls == 'vmem':
            self.vm.append(ins)
        elif ins.cls in ('lds', 'smem'):
            self.lg.append(ins)
        if ins.op == 's_waitcnt':
            m = re.search(r'vmcnt\((\d+)\)', ins.text)
            if m:
                n = int(m.group(1))
                self.vm = self.vm[len(self.vm) - n:] if 0 < n < len(self.vm) else ([] if n == 0 else self.vm)
            m = re.search(r'lgkmcnt\((\d+)\)', ins.text)
            if m:
                n = int(m.group(1))
                self.lg = self.lg[len(self.lg) - n:] if 0 < n < len(self.lg) else ([] if n == 0 else self.lg)
        return ins

    def run(self, items):
        for it in items:
            if callable(it):
                it(self)
            elif isinstance(it, tuple):
                self.I(it[0], tag=it[1], nowaw=(it[1] == 'touch'))
            else:
                self.I(it)

    def text(self):
        return '\n'.join(self.out) + '\n'


def weave(main, fill, start=0, end=None):
    end = len(main) if end is None else end
    n = end - start
    out = []
    k = 0
    for j, m in enumerate(main):
        out.append(m)
        if start <= j < end:
            tgt = (j - start + 1) * len(fill) // n
            while k < tgt:
                out.append(fill[k])
                k += 1
    assert k == len(fill)
    return out


def flat(x):
    out = []
    for e in x:
        if isinstance(e, list):
            out.extend(flat(e))
        else:
            out.append(e)
    return out


def NEED(base, n=4):
    return lambda P: P.need(base, n)


def cost(it):
    if callable(it):
        return 0
    t = it[0] if isinstance(it, tuple) else it
    op = t.split()[0]
    return 8 if op in TRANS else 4


def weave_cost(main, fill):
    tot = sum(cost(f) for f in fill)
    out, k, acc, held = [], 0, 0, []
    for j, m in enumerate(main):
        out.append(m)
        out += held
        held = []
        tgt = tot * (j + 1) / len(main)
        while k < len(fill) and acc + cost(fill[k]) / 2 <= tgt:
            f = fill[k]
            (held if isinstance(f, tuple) else out).append(f)
            acc += cost(f)
            k += 1
    out += held + fill[k:]
    return out
```

```python
from asmlib import *
from layout import *
from prep import srd, srd_off, OOB
import math

sMODE, sWS, sOUT, sBLK, sRB, sHG, sW = 3, 4, 6, 8, 10, 11, 12
sLB, sLBN = 20, 22
rA, rB, rC, rD, rE, rFL, rF, rG, rH = 24, 28, 32, 36, 40, 44, 48, 52, 56
sK8 = 60
sKV, sRUN, sFB, sMASK8, sMASK1, sFLO = 74, 75, 76, 77, 78, 79
sP0, sP1 = 80, 81
sFAST, sLN2 = 73, 92
sXO = 70
sT = 82
vLANE, vL16, vL16B, vSIG, vL4, vIDX, vT0, vT1 = 0, 1, 2, 3, 4, 5, 6, 7
S_ = [8, 24, 40]
Q16 = [56 + 4 * q for q in range(4)]
Q8 = [72 + 2 * q for q in range(4)]
O_ = [80 + 16 * q for q in range(4)]
K16 = [144 + 4 * j for j in range(3)]
K8P = [156 + 4 * j for j in range(2)]
V_ = [164 + 8 * j for j in range(3)]
W1A = [188 + 4 * k for k in range(17)] + [256 + 4 * k for k in range(24)]
W1B = [256 + 96 + 4 * k for k in range(40)] + [168]
W2R = [172 + 4 * k for k in range(4)] + W1A + W1B[:25]
HBUF = W1B[25:41] + [108 + 4 * k for k in range(15)] + [56]
WQR = W2R[:41]
assert len(W2R) == 70 and len(HBUF) == 32

SRD = lambda r: f's[{r}:{r+3}]'
MF32 = lambda d, a, b, c=None: f'v_mfma_f32_32x32x16_bf16 {R(d,16)}, {R(a,4)}, {R(b,4)}, {"0" if c is None else R(c,16)}'
MF8 = lambda d, a, b: f'v_mfma_f32_32x32x8_bf16 {R(d,16)}, {R(a,2)}, {R(b,2)}, {R(d,16)}'
SMF = lambda d, a, b: f'v_smfmac_f32_32x32x32_bf16 {R(d,16)}, {R(a,4)}, {R(b,8)}, v{vIDX}'
MF16 = lambda d, a, b, first: f'v_mfma_f32_16x16x32_bf16 {R(d,4)}, {R(a,4)}, {R(b,4)}, {"0" if first else R(d,4)}'


def fragload(dst, srd_, f, extra=''):
    so = '0' if f < 8 else f's{sK8 + f // 8}'
    vo = vL16B if (f % 8) >= 4 else vL16
    return f'buffer_load_dwordx4 {R(dst,4)}, v{vo}, {SRD(srd_)}, {so} offen offset:{(f % 4) * 1024}{extra}'


class Gen:
    def __init__(self, P, dbg=None):
        self.P = P
        self.dbg = dbg or {}
        self.npoll = 0

    def signal(self, stage):
        P = self.P
        P.wait_tag('pub')
        P.I(f's_cmp_lg_u32 s{sFAST}, 0')
        P.I(f's_cbranch_scc1 Lsigf{stage}')
        vm = list(P.vm)
        P.I('buffer_wbl2 sc1')
        P.I('s_waitcnt vmcnt(0)')
        P.I(f'buffer_store_dword v{vL16B}, v{vSIG}, {SRD(rFL)}, s{sFLO} offen offset:{stage*128} sc1')
        P.I(f's_branch Lsigd{stage}')
        P.label(f'Lsigf{stage}')
        P.vm = vm
        P.I(f'buffer_store_dword v{vL16B}, v{vSIG}, {SRD(rFL)}, s{sFLO} offen offset:{stage*128}')
        P.label(f'Lsigd{stage}')

    def poll(self, stage, smask):
        P = self.P
        n = self.npoll
        self.npoll += 1
        P.I(f's_mov_b32 s{sP0}, 0x400000')
        P.label(f'Lpoll{n}')
        P.I(f'buffer_load_dword v{vT0}, v{vL4}, {SRD(rFL)}, s{sFLO} offen offset:{stage*128} sc1')
        P.I(f's_sub_u32 s{sP0}, s{sP0}, 1')
        P.I(f's_cbranch_scc1 Lpolled{n}')
        P.I('s_waitcnt vmcnt(0)')
        P.I(f'v_cmp_ne_u32 vcc, 0, v{vT0}')
        P.I(f's_and_b32 s{sP1}, vcc_lo, s{smask}')
        P.I(f's_cmp_eq_u32 s{sP1}, s{smask}')
        P.I(f's_cbranch_scc0 Lpoll{n}')
        P.label(f'Lpolled{n}')
        P.I(f's_cmp_lg_u32 s{sFAST}, 0')
        P.I(f's_cbranch_scc1 Lacq{n}')
        P.I('buffer_inv sc1')
        P.I('s_waitcnt vmcnt(0)')
        P.label(f'Lacq{n}')
        P.forget()

    def stamp(self, k):
        if not self.dbg.get('stamps'):
            return
        P = self.P
        P.I('s_memtime s[100:101]')
        P.I('s_waitcnt lgkmcnt(0)')
        P.I(f'v_mov_b32 v{vT1}, s100')
        P.I(f'buffer_store_dword v{vT1}, v{vSIG}, s[96:99], s95 offen offset:{k*128}')
        P.I('s_memrealtime s[100:101]')
        P.I('s_waitcnt lgkmcnt(0)')
        P.I(f'v_mov_b32 v{vT1}, s100')
        P.I(f'buffer_store_dword v{vT1}, v{vSIG}, s[96:99], s94 offen offset:{k*128}')

    def prologue(self):
        P = self.P
        I = P.I
        for name, mode in (('qkv_kernel', 0), ('layer1_kernel', 1), ('layer2_kernel', 2)):
            P.raw('.p2align 8')
            P.raw(f'{name}:')
            I(f's_mov_b32 s{sMODE}, {mode}')
            if mode != 2:
                I('s_branch Lentry')
        P.label('Lentry')
        I('s_cmp_ge_u32 s2, 256')
        I('s_cbranch_scc1 Lend')
        I(f's_load_dwordx2 s[{sWS}:{sWS+1}], s[0:1], 88')
        I(f's_load_dwordx2 s[{sOUT}:{sOUT+1}], s[0:1], 72')
        I(f'v_lshrrev_b32 v{vT0}, 6, v0')
        I(f'v_and_b32 v{vLANE}, 63, v0')
        I(f'v_readfirstlane_b32 s{sW}, v{vT0}')
        I(f'v_lshlrev_b32 v{vL16}, 4, v{vLANE}')
        I(f'v_add_u32 v{vL16B}, 4096, v{vL16}')
        I(f's_and_b32 s13, s2, 7')
        I(f's_lshr_b32 s14, s2, 6')
        I(f's_lshl_b32 s13, s13, 2')
        I(f's_add_u32 s{sRB}, s13, s14')
        I(f's_lshr_b32 s{sHG}, s2, 3')
        I(f's_and_b32 s{sHG}, s{sHG}, 7')
        I(f's_mul_i32 s14, s{sMODE}, {LSTR}')
        I(f's_add_u32 s14, s14, {LAY0 - LSTR}')
        for j in range(1, 10):
            I(f's_mov_b32 s{sK8+j}, {8192*j}')
        I(f's_lshl_b32 s{sBLK}, s{sRB}, 2')
        I(f's_add_u32 s{sBLK}, s{sBLK}, s{sW}')
        I(f's_lshl_b32 s{sBLK}, s{sBLK}, 3')
        I(f's_add_u32 s{sBLK}, s{sBLK}, s{sHG}')
        P.wait(lg=0)
        I(f's_add_u32 s{sLB}, s{sWS}, s14')
        I(f's_addc_u32 s{sLB+1}, s{sWS+1}, 0')
        I(f's_add_u32 s{sLBN}, s{sLB}, {LSTR}')
        I(f's_addc_u32 s{sLBN+1}, s{sLB+1}, 0')
        if self.dbg.get('stamps'):
            self.late_setup()
            I(f's_lshl_b32 s13, s{sMODE}, 20')
            I(f's_add_u32 s13, s13, 0xB00000')
            srd_off(P, 96, sWS, 's13', 0x100000)
            I(f's_lshl_b32 s95, s{sRB}, 12')
            I('s_add_u32 s94, s95, 0x40000')
            self.stamp(0)
        I(f's_cmp_lg_u32 s{sMODE}, 0')
        I('s_cbranch_scc1 Lattn')
        self.wq_srd()
        for k in range(self.WQ_EARLY):
            I(fragload(WQR[k], rF, k))
        I('s_branch Lqkv')
        P.forget()

    WQ_EARLY = 20

    def late_setup(self):
        P = self.P
        I = P.I
        I(f'v_lshrrev_b32 v{vT1}, 5, v{vLANE}')
        I(f'v_lshlrev_b32 v{vL4}, 2, v{vLANE}')
        I(f'v_lshl_add_u32 v{vL4}, v{vT1}, 30, v{vL4}')
        I(f'v_mov_b32 v{vIDX}, 0xdddddddd')
        I(f's_mov_b32 s{sFB}, 0')
        I(f's_lshl_b32 s13, s{sW}, 3')
        I(f's_lshl_b32 s{sMASK8}, 0xff, s13')
        I(f's_lshl_b32 s{sMASK1}, 0x11111111, s{sW}')
        I(f's_lshl_b32 s13, s{sHG}, 2')
        I(f's_add_u32 s13, s13, s{sW}')
        I(f's_lshl_b32 s13, s13, 2')
        I(f'v_mov_b32 v{vSIG}, {OOB}')
        I(f'v_mov_b32 v{vT1}, s13')
        I(f'v_cmp_eq_u32 vcc, 0, v{vLANE}')
        I(f'v_cndmask_b32 v{vSIG}, v{vSIG}, v{vT1}, vcc')
        I(f's_lshr_b32 s15, s{sMODE}, 1')
        I(f's_lshl_b32 s15, s15, 5')
        I(f's_add_u32 s15, s15, s{sRB}')
        I(f's_lshl_b32 s{sFLO}, s15, 10')
        srd_off(P, rFL, sWS, FLG, 65536)

    def wq_srd(self):
        P = self.P
        P.I(f's_lshl_b32 s13, s{sHG}, 2')
        P.I(f's_add_u32 s13, s13, s{sW}')
        P.I(f's_mul_i32 s13, s13, {TILE}')
        srd_off(P, rF, sWS, 's13', TILE)

    def kv_loads(self, i):
        e, kb, vb = i % 2, K16[i % 3], V_[i % 3]
        L = []
        if e == 0:
            L.append(f'buffer_load_dwordx4 {R(vb,4)}, v{vL16}, {SRD(rB)}, s{sKV} offen offset:3072')
            L.append(f'buffer_load_dwordx4 {R(vb+4,4)}, v{vL16B}, {SRD(rB)}, s{sKV} offen')
            L.append(f'buffer_load_dwordx4 {R(K8P[(i//2)%2],4)}, v{vL16}, {SRD(rB)}, s{sKV} offen offset:2048')
        else:
            L.append(f'buffer_load_dwordx4 {R(vb,4)}, v{vL16B}, {SRD(rB)}, s{sKV} offen offset:1024')
            L.append(f'buffer_load_dwordx4 {R(vb+4,4)}, v{vL16B}, {SRD(rB)}, s{sKV} offen offset:2048')
        L.append(f'buffer_load_dwordx4 {R(kb,4)}, v{vL16}, {SRD(rB)}, s{sKV} offen offset:{1024*e}')
        return L

    def attention(self):
        P = self.P
        I = P.I
        P.label('Lattn')
        I(f's_lshl_b32 s13, s{sRB}, 3')
        I(f's_add_u32 s13, s13, s{sHG}')
        I(f's_mul_i32 s13, s13, 12288')
        I(f's_add_u32 s13, s13, {QF}')
        srd_off(P, rA, sLB, 's13', 12288)
        srd_off(P, rB, sLB, KVF, 32 * 7168)
        I(f's_and_b32 s13, s{sW}, 1')
        I(f's_mul_i32 s{sKV}, s13, {16*7168}')
        for t in self.kv_loads(0)[::-1]:
            I(t)
        I(f's_mul_i32 s14, s{sW}, 3072')
        I(f's_xor_b32 s15, s{sW}, 1')
        I(f's_mul_i32 s15, s15, 3072')
        I(f'v_lshlrev_b32 v{vT0}, 3, v{vLANE}')
        for q in range(4):
            so = 's15' if q < 2 else 's14'
            I(f'buffer_load_dwordx4 {R(Q16[q],4)}, v{vL16}, {SRD(rA)}, {so} offen offset:{(q%2)*1536}')
            I(f'buffer_load_dwordx2 {R(Q8[q],2)}, v{vT0}, {SRD(rA)}, {so} offen offset:{(q%2)*1536+1024}')
        for t in self.kv_loads(1):
            I(t)
        I(f's_lshr_b32 s13, s2, 3')
        I(f's_mul_i32 s13, s13, 7168')
        I(f's_mul_i32 s14, s{sW}, 1792')
        I(f's_add_u32 s13, s13, s14')
        I(f'buffer_load_dwordx4 {R(S_[2],4)}, v{vL16}, {SRD(rB)}, s13 offen')
        I(f'buffer_load_dwordx4 {R(S_[2]+4,4)}, v{vL16}, {SRD(rB)}, s13 offen offset:1024')
        self.late_setup()
        I(f's_getreg_b32 s{sFAST}, hwreg(HW_REG_XCC_ID, 0, 4)')
        I(f's_add_u32 s{sFAST}, s{sFAST}, 1')
        I(f'v_mov_b32 v{vT1}, s{sFAST}')
        I(f'buffer_store_dword v{vT1}, v{vSIG}, {SRD(rFL)}, s{sFLO} offen offset:512 sc1')
        I(f's_mov_b32 s{sLN2}, 0x3f317218')
        I(f's_mov_b32 s{sLN2+1}, 0x3f317218')
        I(f's_mul_i32 s13, s{sHG}, 7')
        I(f's_lshl_b32 s14, s{sW}, 1')
        I(f's_add_u32 s13, s13, s14')
        I(f's_cmp_lt_u32 s13, 54')
        I(f's_cselect_b32 s{sT}, {TILE}, 0')
        I(f's_add_u32 s15, s13, 1')
        I(f's_cmp_lt_u32 s15, 54')
        I(f's_cselect_b32 s{sT+1}, {TILE}, 0')
        I(f's_cmp_lt_u32 s{sW}, 3')
        I(f's_cselect_b32 s{sT+1}, s{sT+1}, 0')
        I(f's_mov_b32 s{sT+2}, s13')
        I(f's_mul_i32 s14, s13, {TILE}')
        I(f's_add_u32 s14, s14, {W1F}')
        srd_off(P, rC, sWS, 's14', f's{sT}')
        I(f's_add_u32 s14, s14, {TILE}')
        srd_off(P, rD, sWS, 's14', f's{sT+1}')
        I(f's_mul_i32 s14, s{sHG}, 102400')
        I(f's_add_u32 s14, s14, {WOF}')
        srd_off(P, rE, sWS, 's14', 102400)
        P.label('Lattn_main')
        I(f's_mul_i32 m0, s{sW}, 25600')
        for r in range(64):
            I(f'v_mov_b32 v{O_[0]+r}, 0')
        pre = []
        for k in range(41):
            pre.append([fragload(W1A[k], rC, k)])
        for k in range(25):
            g = []
            if k and k % 4 == 0:
                g.append('s_add_u32 m0, m0, 4096')
            g.append((f'buffer_load_dwordx4 v{vL16}, {SRD(rE)}, m0 offen offset:{(k%4)*1024} lds', 'wo'))
            pre.append(g)
        for k in range(40):
            pre.append([fragload(W1B[k], rD, k)])
        NW = 128
        extra = [[] for _ in range(NW)]
        for i in range(30):
            g = []
            if i % 2 == 0:
                g.append(f's_add_u32 s{sKV}, s{sKV}, 7168')
            if not self.dbg.get('nokv'):
                extra[4 * i + 1] += g + self.kv_loads(i + 2)
        if self.dbg.get('nopre'):
            pre = []
        slots = [n for n in range(2, 120) if n % 4 in (0, 3)]
        per = -(-len(pre) // len(slots))
        for k, g in enumerate(pre):
            extra[slots[k // per]] += g

        def M1(n):
            return MF32(S_[n % 3], K16[(n // 4) % 3], Q16[n % 4])

        def M2(n):
            i = n // 4
            return MF8(S_[n % 3], K8P[(i // 2) % 2] + 2 * (i % 2), Q8[n % 4])

        def P1(n):
            return SMF(O_[n % 4], V_[(n // 4) % 3], S_[n % 3])

        def P2(n):
            return SMF(O_[n % 4], V_[(n // 4) % 3] + 4, S_[n % 3] + 8)

        sO1, sO2, sXW, sXR = sT + 3, sT + 6, sT + 7, sT + 9
        free = [f's_mul_i32 s{sXW}, s{sW}, 6144', f's_add_u32 s{sXW}, s{sXW}, {L_RED}',
                f's_xor_b32 s{sXR}, s{sW}, 1', f's_mul_i32 s{sXR}, s{sXR}, 6144', f's_add_u32 s{sXR}, s{sXR}, {L_RED}',
                f's_and_b32 s13, s{sHG}, 1', f's_mul_i32 s13, s13, 10', f's_lshl_b32 s14, s{sW}, 1',
                f's_add_u32 s14, s14, s13', f's_lshr_b32 s15, s{sW}, 1', f's_add_u32 s15, s15, s13',
                f's_add_u32 s15, s15, 8', f's_lshr_b32 s16, s{sHG}, 1', f's_mul_i32 s16, s16, {5*4096}',
                f's_lshr_b32 s17, s14, 2', f's_lshl_b32 s17, s17, 12', f's_and_b32 s14, s14, 3',
                f's_lshl_b32 s14, s14, 8', f's_add_u32 s14, s14, s17', f's_add_u32 s{sO1}, s14, s16',
                f's_lshr_b32 s17, s15, 2', f's_lshl_b32 s17, s17, 12', f's_and_b32 s15, s15, 3',
                f's_lshl_b32 s15, s15, 8', f's_add_u32 s15, s15, s17', f's_add_u32 s15, s15, s16',
                f's_and_b32 s17, s{sW}, 1', f's_lshl_b32 s17, s17, 3', f's_add_u32 s{sO2}, s15, s17',
                f's_mul_i32 s16, s{sRB}, 81920', f's_add_u32 s16, s16, {OF}',
                [f's_add_u32 s{rA}, s{sLB}, s16', f's_addc_u32 s{rA+1}, s{sLB+1}, 0'],
                f's_mov_b32 s{rA+2}, 81920', f's_mov_b32 s{rA+3}, 0x20000',
                [f's_sub_u32 s{rG}, s{sLB}, {LSTR - X2}', f's_subb_u32 s{rG+1}, s{sLB+1}, 0'],
                f's_mov_b32 s{rG+2}, 0x300000', f's_mov_b32 s{rG+3}, 0x20000',
                [f's_add_u32 s{rH}, s{sLB}, {X1}', f's_addc_u32 s{rH+1}, s{sLB+1}, 0'],
                f's_mov_b32 s{rH+2}, 0x300000', f's_mov_b32 s{rH+3}, 0x20000',
                f's_mul_i32 s{sRUN}, s{sW}, {5*4096}']
        vW, vRd, vID = vT0, vT1, K8P[0]
        self.stamp(1)
        I(M1(0))
        I(M2(0))
        for n in range(NW):
            s = S_[n % 3]
            E = [f'v_exp_f32 v{s+r}, v{s+r}' for r in range(16)]
            seq = []
            if n + 1 < NW:
                seq.append(M1(n + 1))
            if n >= 8 and free:
                f = free.pop(0)
                if isinstance(f, list):
                    extra[n] = f + extra[n]
                else:
                    seq.append(f)
            seq += E[0:4]
            if n + 1 < NW:
                seq.append(M2(n + 1))
            seq += E[4:8]
            if n > 0:
                seq.append(P2(n - 1))
            seq += extra[n]
            if n == 121:
                seq.append(f'buffer_load_dword v{vID}, v{vL4}, {SRD(rFL)}, s{sFLO} offen offset:512 sc1')
            if n == 127:
                seq += [f'ds_write_b128 v{vW}, {R(O_[1] + 4*j, 4)} offset:{1024*(3+j)}' for j in range(3)]
            seq += E[8:12]
            seq.append(P1(n))
            if n % 4 == 2 and n + 2 < NW:
                seq.append(NEED(K16[((n + 2) // 4) % 3]))
            if n == 125:
                seq += [f'v_add_u32 v{vW}, s{sXW}, v{vL16}', f'v_add_u32 v{vRd}, s{sXR}, v{vL16}']
            if n == 126:
                seq += [f'ds_write_b128 v{vW}, {R(O_[0] + 4*j, 4)} offset:{1024*j}' for j in range(3)]
            seq += E[12:16]
            P.run(seq)
        assert not free
        P.wait(lg=0)
        I('s_barrier')
        RX = O_[0]
        for j in range(6):
            I(f'ds_read_b128 {R(RX + 4*j, 4)}, v{vRd} offset:{1024*j}')
        I(P2(NW - 1))
        self.stamp(2)
        vO, vO2, vHF = S_[0], S_[0] + 1, S_[0] + 2
        I(f'v_lshrrev_b32 v{vHF}, 5, v{vLANE}')
        I(f'v_and_b32 v{vO}, 15, v{vLANE}')
        I(f'v_lshlrev_b32 v{vO}, 4, v{vO}')
        I(f'v_bfe_u32 v{vT0}, v{vLANE}, 4, 1')
        I(f'v_lshl_add_u32 v{vO2}, v{vT0}, 10, v{vO}')
        I(f'v_lshl_add_u32 v{vO}, v{vHF}, 8, v{vO2}')
        I(f'v_lshl_add_u32 v{vO2}, v{vHF}, 30, v{vO2}')
        I(f'v_cmp_eq_u32 vcc, s{sFAST}, v{vID}')
        I(f's_mov_b32 s16, 0x21800000')
        I(f's_mov_b32 s17, 0x5f800000')
        I(f's_cmp_eq_u32 vcc_lo, -1')
        I(f's_cselect_b32 s72, 1, 0')
        if self.dbg.get('forceslow'):
            I(f's_mov_b32 s72, 0')
        OWN = [O_[2], O_[3]]
        vl = [S_[0] + 4, S_[0] + 6]
        PK = S_[0] + 8
        for t in range(2):
            o = OWN[t]
            for j in (4, 5, 0, 1, 2, 3):
                I(f'v_pk_add_f32 {R(o + 2*j, 2)}, {R(o + 2*j, 2)}, {R(RX + 12*t + 2*j, 2)}')
            I(f'v_mov_b32 v{vl[t]}, v{o + 8}')
            I(f'v_mov_b32 v{vl[t]+1}, v{o + 8}')
            I(f'v_permlane32_swap_b32 v{vl[t]}, v{vl[t]+1}')
            I(f'v_rcp_f32 v{vl[t]}, v{vl[t]+1}')
        I(f'v_cmp_le_f32 vcc, s16, v{vl[0]+1}')
        I(f'v_cmp_ge_f32 s[18:19], s17, v{vl[0]+1}')
        I(f's_and_b64 s[{sT+4}:{sT+5}], vcc, s[18:19]')
        I(f'v_cmp_le_f32 vcc, s16, v{vl[1]+1}')
        I(f'v_cmp_ge_f32 s[18:19], s17, v{vl[1]+1}')
        I(f's_and_b64 s[{sT+4}:{sT+5}], s[{sT+4}:{sT+5}], vcc')
        I(f's_and_b64 s[{sT+4}:{sT+5}], s[{sT+4}:{sT+5}], s[18:19]')
        I(f's_cmp_eq_u64 s[{sT+4}:{sT+5}], -1')
        I(f's_cselect_b32 s16, 0, 1')
        if self.dbg.get('forcefb'):
            I('s_mov_b32 s16, 1')
        I(f's_lshl_b32 s17, s{sW}, 2')
        I(f's_add_u32 s17, s17, {L_CK}')
        I(f'v_mov_b32 v{vT0}, s16')
        I(f'v_mov_b32 v{vT1}, s17')
        I(f'ds_write_b32 v{vT1}, v{vT0}')
        for t in range(2):
            o = OWN[t]
            I(f'v_mov_b32 v{vl[t]+1}, v{vl[t]}')
            for j in range(6):
                I(f'v_pk_mul_f32 {R(o + 2*j, 2)}, {R(o + 2*j, 2)}, {R(vl[t], 2)}')
            for d in range(6):
                I(f'v_cvt_pk_bf16_f32 v{PK+8*t+d}, v{o+2*d}, v{o+2*d+1}')
            I(f'buffer_store_dwordx4 {R(PK+8*t,4)}, v{vO}, {SRD(rA)}, s{sO1} offen offset:{2048*t}', tag='pub')
            I(f'buffer_store_dwordx2 {R(PK+8*t+4,2)}, v{vO2}, {SRD(rA)}, s{sO2} offen offset:{2048*t}', tag='pub')
        P.wait(lg=0)
        I('s_barrier')
        I(f'v_mov_b32 v{vT1}, {L_CK}')
        I(f'ds_read_b128 {R(RX,4)}, v{vT1}')
        self.slot_offsets(184)
        I(f'v_or3_b32 v{RX}, v{RX}, v{RX+1}, v{RX+2}')
        I(f'v_or_b32 v{RX}, v{RX}, v{RX+3}')
        I(f'v_readfirstlane_b32 s16, v{RX}')
        I(f's_andn2_b32 s16, s16, s{sFB}')
        I(f's_cbranch_scc1 Lfallback')
        I(f's_mov_b32 s{sFAST}, s72')

    def fallback(self):
        P = self.P
        I = P.I
        P.label('Lfallback')
        P.drain()
        MX = O_[0]
        I(f's_mov_b32 s{sFB}, 1')
        for q in range(4):
            I(f'v_mov_b32 v{MX+q}, 0xff800000')
        I(f's_and_b32 s13, s{sW}, 1')
        I(f's_mul_i32 s{sKV}, s13, {16*7168}')
        I(f's_mov_b32 s13, 16')
        P.label('Lfb_loop')
        I(f'buffer_load_dwordx4 {R(K16[0],4)}, v{vL16}, {SRD(rB)}, s{sKV} offen')
        I(f'buffer_load_dwordx4 {R(K16[1],4)}, v{vL16}, {SRD(rB)}, s{sKV} offen offset:1024')
        I(f'buffer_load_dwordx4 {R(K8P[0],4)}, v{vL16}, {SRD(rB)}, s{sKV} offen offset:2048')
        P.wait(vm=0)
        for e in range(2):
            for q in range(4):
                s = S_[q % 2]
                I(MF32(s, K16[e], Q16[q]))
                I(MF8(s, K8P[0] + 2 * e, Q8[q]))
                for r in range(0, 16, 2):
                    I(f'v_max3_f32 v{MX+q}, v{MX+q}, v{s+r}, v{s+r+1}')
        I(f's_add_u32 s{sKV}, s{sKV}, 7168')
        I('s_sub_u32 s13, s13, 1')
        I('s_cmp_lg_u32 s13, 0')
        I('s_cbranch_scc1 Lfb_loop')
        for q in range(4):
            I(f'v_mov_b32 v{MX+4+q}, v{MX+q}')
        for q in range(4):
            I(f'v_permlane32_swap_b32 v{MX+q}, v{MX+4+q}')
        for q in range(4):
            I(f'v_max_f32 v{MX+q}, v{MX+q}, v{MX+4+q}')
        I(f's_lshl_b32 s13, s{sW}, 10')
        I(f's_add_u32 s13, s13, {L_MX}')
        I(f's_xor_b32 s14, s13, 1024')
        I(f'v_add_u32 v{MX+8}, s13, v{vL16}')
        I(f'v_add_u32 v{MX+9}, s14, v{vL16}')
        I(f'ds_write_b128 v{MX+8}, {R(MX,4)}')
        P.wait(lg=0)
        I('s_barrier')
        I(f'ds_read_b128 {R(MX+4,4)}, v{MX+9}')
        I(f'v_cmp_le_u32 vcc, 32, v{vLANE}')
        for q in range(4):
            a, b, c = MX + 12, MX + 13, MX + 14
            I(f'v_max_f32 v{a}, v{MX+q}, v{MX+4+(q^2)}')
            I(f'v_sub_f32 v{a}, 0, v{a}')
            I(f'v_cvt_pk_bf16_f32 v{b}, v{a}, v{a}')
            I(f'v_and_b32 v{b}, 0xffff0000, v{b}')
            I(f'v_sub_f32 v{a}, v{a}, v{b}')
            I(f'v_cvt_pk_bf16_f32 v{c}, v{b}, v{a}')
            I(f'v_and_b32 v{b}, 0xffff0000, v{c}')
            I(f'v_sub_f32 v{a}, v{a}, v{b}')
            I(f'v_cvt_pk_bf16_f32 v{b}, v{a}, 0')
            I(f'v_cndmask_b32 v{Q8[q]}, v{Q8[q]}, v{c}, vcc')
            I(f'v_cndmask_b32 v{Q8[q]+1}, v{Q8[q]+1}, v{b}, vcc')
        I(f's_and_b32 s13, s{sW}, 1')
        I(f's_mul_i32 s{sKV}, s13, {16*7168}')
        for t in self.kv_loads(0) + self.kv_loads(1):
            I(t)
        P.drain()
        I('s_barrier')
        I('s_branch Lattn_main')
        P.forget()

    def slot_offsets(self, vS):
        P = self.P
        for j in range(4):
            P.I(f's_add_u32 s13, s{sW}, {j}')
            P.I(f's_and_b32 s13, s13, 3')
            P.I(f's_lshl_b32 s13, s13, 10')
            P.I(f'v_add_u32 v{vS+j}, s13, v{vL16}')

    def xs_srd(self, r, sbase, off):
        srd_off(self.P, r, sbase, off, 0x300000)

    def xs_setup(self, vTail, vSt):
        I = self.P.I
        I(f's_mul_i32 s{sXO}, s{sBLK}, 2560')
        I(f's_lshl_b32 s{sXO+1}, s{sBLK}, 7')
        I(f's_add_u32 s{sXO+1}, s{sXO+1}, {STT}')
        I(f'v_and_b32 v{vSt}, 15, v{vLANE}')
        I(f'v_lshrrev_b32 v{vT0}, 5, v{vLANE}')
        I(f'v_lshlrev_b32 v{vTail}, 8, v{vT0}')
        I(f'v_lshl_add_u32 v{vTail}, v{vSt}, 4, v{vTail}')
        I(f'v_bfe_u32 v{vT0}, v{vLANE}, 4, 1')
        I(f'v_lshl_add_u32 v{vTail}, v{vT0}, 3, v{vTail}')
        I(f'v_lshrrev_b32 v{vT0}, 4, v{vLANE}')
        I(f'v_lshlrev_b32 v{vSt}, 3, v{vSt}')
        I(f'v_lshl_add_u32 v{vSt}, v{vT0}, 30, v{vSt}')

    def red_setup(self, vW):
        I = self.P.I
        for j in range(4):
            I(f's_add_u32 s13, s{sW}, {j}')
            I(f's_and_b32 s13, s13, 3')
            I(f's_mul_i32 s13, s13, 15360')
            I(f's_add_u32 s13, s13, {L_RED + max(j-1, 0)*5120}')
            I(f'v_add_u32 v{vW+j}, s13, v{vL16}')

    def last_kstep(self, ACC, mf, vW, RES):
        P = self.P
        order = [(ct, j) for j in (1, 2, 3, 0) for ct in range(5)]
        pend = []
        for n, (ct, j) in enumerate(order):
            P.I(mf(ct, j))
            if j:
                pend.append((n, f'ds_write_b128 v{vW+j}, {R(ACC[ct][j],4)} offset:{1024*ct}'))
            if pend and n - pend[0][0] >= 5:
                P.I(pend.pop(0)[1])
        for _, t in pend:
            P.I(t)

    def reduce_tail(self, ACC, TMP, RES, vW, keep, _, scaled):
        P = self.P
        I = P.I
        P.wait(lg=0)
        I('s_barrier')
        for ct in range(5):
            for j in range(3):
                I(f'ds_read_b128 {R(TMP + 12*ct + 4*j, 4)}, v{vW} offset:{5120*j + 1024*ct}')
        for ct in range(5):
            for d in range(2):
                t = ACC[ct][2] + 2 * d
                I(f'v_lshlrev_b32 v{t}, 16, v{RES+2*ct+d}')
                I(f'v_and_b32 v{t+1}, 0xffff0000, v{RES+2*ct+d}')
        for ct in range(5):
            a = ACC[ct][0]
            t = TMP + 12 * ct
            for r in (0, 2):
                I(f'v_pk_add_f32 {R(t+r,2)}, {R(t+r,2)}, {R(t+4+r,2)}')
            for r in (0, 2):
                I(f'v_pk_add_f32 {R(a+r,2)}, {R(a+r,2)}, {R(t+8+r,2)}')
            for r in (0, 2):
                I(f'v_pk_add_f32 {R(a+r,2)}, {R(a+r,2)}, {R(t+r,2)}')
            for r in (0, 2):
                if scaled:
                    I(f'v_pk_fma_f32 {R(a+r,2)}, {R(a+r,2)}, s[{sLN2}:{sLN2+1}], {R(ACC[ct][2]+r,2)}')
                else:
                    I(f'v_pk_add_f32 {R(a+r,2)}, {R(a+r,2)}, {R(ACC[ct][2]+r,2)}')
            for d in range(2):
                I(f'v_cvt_pk_bf16_f32 v{keep+2*ct+d}, v{a+2*d}, v{a+2*d+1}')

    def publish_x(self, ACC, keep, rX, vTail, vSt, T):
        P = self.P
        I = P.I
        I(f'buffer_store_dwordx4 {R(keep,4)}, v{vL16}, {SRD(rX)}, s{sXO} offen', tag='pub')
        I(f'buffer_store_dwordx4 {R(keep+4,4)}, v{vL16}, {SRD(rX)}, s{sXO} offen offset:1024', tag='pub')
        I(f'buffer_store_dwordx2 {R(keep+8,2)}, v{vTail}, {SRD(rX)}, s{sXO} offen offset:2048', tag='pub')
        a0 = ACC[0][0]
        I(f'v_pk_add_f32 {R(T,2)}, {R(a0,2)}, {R(a0+2,2)}')
        I(f'v_pk_mul_f32 {R(T+2,2)}, {R(a0,2)}, {R(a0,2)}')
        I(f'v_pk_fma_f32 {R(T+2,2)}, {R(a0+2,2)}, {R(a0+2,2)}, {R(T+2,2)}')
        for ct in range(1, 5):
            a = ACC[ct][0]
            for r in (0, 2):
                I(f'v_pk_add_f32 {R(T,2)}, {R(T,2)}, {R(a+r,2)}')
                I(f'v_pk_fma_f32 {R(T+2,2)}, {R(a+r,2)}, {R(a+r,2)}, {R(T+2,2)}')
        I(f'v_add_f32 v{T}, v{T}, v{T+1}')
        I(f'v_add_f32 v{T+1}, v{T+2}, v{T+3}')
        for sw in ('16', '32'):
            I(f'v_mov_b32 v{T+2}, v{T}')
            I(f'v_mov_b32 v{T+3}, v{T+1}')
            I(f'v_permlane{sw}_swap_b32 v{T}, v{T+2}')
            I(f'v_permlane{sw}_swap_b32 v{T+1}, v{T+3}')
            I(f'v_pk_add_f32 {R(T,2)}, {R(T,2)}, {R(T+2,2)}')
        I(f'buffer_store_dwordx2 {R(T,2)}, v{vSt}, {SRD(rX)}, s{sXO+1} offen', tag='pub')

    def wo_stage(self):
        P = self.P
        I = P.I
        ACC = [[8 + 16 * ct + 4 * j for j in range(4)] for ct in range(5)]
        B = [[88 + 16 * k + 4 * j for j in range(4)] for k in range(5)]
        A = [168 + 4 * j for j in range(4)]
        vS = 184
        vA = vT1
        I(f's_mul_i32 s13, s{sW}, 25600')
        I(f'v_add_u32 v{vA}, s13, v{vL16}')
        rd = lambda f: f'ds_read_b128 {R(A[f % 4],4)}, v{vA} offset:{1024*f}'
        P.wait_tag('wo')
        for f in range(3):
            I(rd(f))
        self.signal(0)
        if self.dbg.get('stamps'):
            I(f'v_mov_b32 v16, v{vA}')
            self.stamp(3)
            I(f'v_mov_b32 v{vA}, v16')
        self.poll(0, sMASK8)

        def bload(k):
            L = [f'buffer_load_dwordx4 {R(B[k][j],4)}, v{vS+j}, {SRD(rA)}, s{sRUN} offen sc1' for j in range(4)]
            if k < 4:
                L.append(f's_add_u32 s{sRUN}, s{sRUN}, 4096')
            return L
        P.run(bload(0) + bload(1))
        side = bload(2) + bload(3) + bload(4)
        if self.dbg.get('stamps'):
            I(f'v_mov_b32 v16, v{vA}')
            self.stamp(4)
            I(f'v_mov_b32 v{vA}, v16')
        RES, vTail, vSt = 88, 98, 99
        vW = vS
        A4 = [104, 108, 112, 116, 100]
        for k in range(4):
            for ct in range(5):
                f = 5 * k + ct
                for j in range(4):
                    I(MF16(ACC[ct][j], A[f % 4], B[k][j], k == 0))
                    if j == 0 and f + 3 < 20:
                        I(rd(f + 3))
                    if j == 1:
                        P.need(A[(f + 1) % 4], 4)
                    if j == 2 and ct == 4:
                        P.need(B[k + 1][3], 4)
                    if k == 2 and j == 2:
                        I(f'ds_read_b128 {R(A4[ct],4)}, v{vA} offset:{1024*(20+ct)}')
                    if k == 0 and side and (j >= 2 or ct == 4):
                        I(side.pop(0))
                        if side and side[0].startswith('s_'):
                            I(side.pop(0))
            if k == 0:
                assert not side, side
                self.xs_setup(vTail, vSt)
                I(f'buffer_load_dwordx4 {R(RES,4)}, v{vL16}, {SRD(rG)}, s{sXO} offen')
                I(f'buffer_load_dwordx4 {R(RES+4,4)}, v{vL16}, {SRD(rG)}, s{sXO} offen offset:1024')
                I(f'buffer_load_dwordx2 {R(RES+8,2)}, v{vTail}, {SRD(rG)}, s{sXO} offen offset:2048')
                self.red_setup(vW)
        self.last_kstep(ACC, lambda ct, j: MF16(ACC[ct][j], A4[ct], B[4][j], False), vW, RES)
        self.stamp(5)
        self.reduce_tail(ACC, 104, RES, vW, 172, 88 - 0, False)
        self.publish_x(ACC, 172, rH, vTail, vSt, 104)
        self.X1K = 172

    def ximage_setup(self, vXB, vSB):
        I = self.P.I
        I(f'v_and_b32 v{vSB}, 15, v{vLANE}')
        I(f'v_bfe_u32 v{vT0}, v{vLANE}, 4, 1')
        I(f'v_mul_u32_u24 v{vXB}, 20480, v{vT0}')
        I(f'v_lshl_add_u32 v{vXB}, v{vSB}, 4, v{vXB}')
        I(f'v_lshrrev_b32 v{vT0}, 5, v{vLANE}')
        I(f'v_lshl_add_u32 v{vXB}, v{vT0}, 8, v{vXB}')
        I(f'v_lshrrev_b32 v{vT0}, 4, v{vLANE}')
        I(f'v_lshlrev_b32 v{vSB}, 3, v{vSB}')
        I(f'v_lshl_add_u32 v{vSB}, v{vT0}, 8, v{vSB}')

    def ximage_srd(self, r, off):
        I = self.P.I
        I(f's_mul_i32 s13, s{sRB}, 81920')
        I(f's_add_u32 s13, s13, {off}')
        srd_off(self.P, r, sLB, 's13', 81920)
        I(f's_lshr_b32 s13, s{sBLK}, 3')
        I(f's_lshl_b32 s13, s13, 10')
        I(f's_add_u32 s13, s13, {off + STT}')
        srd_off(self.P, r + 4, sLB, 's13', 1024)
        I(f's_mul_i32 m0, s{sW}, 20480')

    def ximage_load(self, rX, vSB, SB):
        P = self.P
        I = P.I
        I(f'buffer_load_dwordx2 {R(SB,2)}, v{vSB}, {SRD(rX+4)}, 0 offen sc1')
        I(f'buffer_load_dwordx2 {R(SB+2,2)}, v{vSB}, {SRD(rX+4)}, 0 offen offset:128 sc1')
        L = []
        for i in range(20):
            g = []
            if i and i % 4 == 0:
                g.append('s_add_u32 m0, m0, 4096')
            g.append((f'buffer_load_dwordx4 v{vL16}, {SRD(rX)}, m0 offen offset:{1024*(i%4)} sc1 lds', f'x{i//5}'))
            L.append(g)
        P.run(flat(L[:10]))
        return L[10:]

    def xfrag(self, dst, vXB, ks, tt):
        return f'ds_read_b128 {R(dst,4)}, v{vXB} offset:{tt*40960 + ks*512}'

    def stats_final(self, s1, s2, T):
        a, b = T, T + 1
        L = []
        for s in (s1, s2):
            L += [f'v_mov_b32 v{a}, v{s}', f'v_permlane16_swap_b32 v{s}, v{a}', f'v_add_f32 v{s}, v{s}, v{a}',
                  f'v_mov_b32 v{a}, v{s}', f'v_permlane32_swap_b32 v{s}, v{a}', f'v_add_f32 v{s}, v{s}, v{a}']
        G = T + 4
        inv = '0x3acccccd'
        L += [f'v_mul_f32 v{s1}, {inv}, v{s1}',
              f'v_mul_f32 v{s2}, {inv}, v{s2}',
              f'v_fma_f32 v{s2}, -v{s1}, v{s1}, v{s2}',
              f'v_max_f32 v{s2}, 0, v{s2}',
              f'v_add_f32 v{s2}, 0x3727c5ac, v{s2}',
              f'v_rsq_f32 v{a}, v{s2}',
              f'v_sub_f32 v{s1}, 0, v{s1}',
              f'v_mul_f32 v{s2}, v{s2}, v{a}',
              f'v_cvt_pk_bf16_f32 v{G+1}, v{s1}, v{s2}',
              f'v_lshlrev_b32 v{b}, 16, v{G+1}',
              f'v_sub_f32 v{s1}, v{s1}, v{b}',
              f'v_cvt_pk_bf16_f32 v{G}, v{b}, v{s1}',
              f'v_and_b32 v{b}, 0xffff0000, v{G+1}',
              f'v_sub_f32 v{s2}, v{s2}, v{b}',
              f'v_cvt_pk_bf16_f32 v{G+2}, v{s2}, 0',
              f'v_mov_b32 v{G+3}, 0',
              f's_lshl_b32 s13, s{sW}, 4',
              f'v_and_b32 v{b}, 15, v{vLANE}',
              f'v_add_u32 v{b}, s13, v{b}',
              f'v_lshlrev_b32 v{s1}, 4, v{b}',
              f'v_lshlrev_b32 v{b}, 2, v{b}',
              f'v_add_u32 v{s1}, {L_EX}, v{s1}',
              f'v_add_u32 v{b}, {L_RS}, v{b}',
              f'ds_write_b128 v{s1}, {R(G,4)}',
              f'ds_write_b32 v{b}, v{a}']
        return L

    def stats_fetch(self, BX, RS, T):
        L = [f'v_and_b32 v{T}, 31, v{vLANE}', f'v_lshlrev_b32 v{T+1}, 2, v{T}', f'v_lshlrev_b32 v{T}, 4, v{T}',
             f'v_add_u32 v{T}, {L_EX}, v{T}', f'v_add_u32 v{T+1}, {L_RS}, v{T+1}']
        for tt in range(2):
            L.append(f'ds_read_b128 {R(BX[tt],4)}, v{T} offset:{512*tt}')
            L.append(f'ds_read_b32 v{RS[tt]}, v{T+1} offset:{128*tt}')
        return L

    def dual_pass(self, ACC, W, BB, vXB, SB, T, BX, RS, early, paced=None):
        P = self.P
        nb = len(BB)
        units = [(ks, tt) for ks in range(40) for tt in range(2)]
        AH = nb - 1
        pend_k = 0
        P.I(f'v_add_f32 v{SB}, v{SB}, v{SB+2}')
        P.I(f'v_add_f32 v{SB+1}, v{SB+1}, v{SB+3}')
        P.run(self.stats_final(SB, SB + 1, T))

        def arrive(c):
            P.wait_tag(f'x{c}')
            P.I('s_barrier')
        P.wait(lg=0)
        arrive(0)
        for u in range(AH):
            P.I(self.xfrag(BB[u % nb], vXB, *units[u]))
        P.run(self.stats_fetch(BX, RS, T))
        for u, (ks, tt) in enumerate(units):
            P.I(MF32(ACC[tt], W[ks], BB[u % nb], None if ks == 0 else ACC[tt]))
            un = u + AH
            if un < len(units):
                if un % 20 == 0:
                    arrive(un // 20)
                P.I(self.xfrag(BB[un % nb], vXB, *units[un]))
            if early:
                P.run(flat([early.pop(0)]))
            elif paced and u >= 24 and u % 3 == 0:
                P.I(paced.pop(0))
            if u + 1 < len(units):
                P.need(BB[(u + 1) % nb], 4)
                P.need(W[units[u + 1][0]], 4)
        for tt in range(2):
            P.I(MF32(ACC[tt], W[40], BX[tt], ACC[tt]))

    def mish_tile(self, acc, tt, C, T, rOut):
        PKB = T + 8
        L = []
        for g in range(4):
            a = acc + 4 * g
            t = T + 4 * (g % 2)
            u = T + 16
            L += [f'v_mul_f32 v{a+i}, v{a+i}, v{C[tt]}' for i in range(4)]
            L += [f'v_exp_f32 v{t+i}, v{a+i}' for i in range(4)]
            L += [f'v_fma_f32 v{u+i}, v{t+i}, 0.5, 1.0' for i in range(4)]
            L += [f'v_fma_f32 v{t+i}, v{t+i}, v{u+i}, 1.0' for i in range(4)]
            L += [f'v_rcp_f32 v{t+i}, v{t+i}' for i in range(4)]
            L += [f'v_fma_f32 v{a+i}, -v{a+i}, v{t+i}, v{a+i}' for i in range(4)]
            p = PKB + 4 * (g // 2) + 2 * (g % 2)
            L += [f'v_cvt_pk_bf16_f32 v{p}, v{a}, v{a+1}', f'v_cvt_pk_bf16_f32 v{p+1}, v{a+2}, v{a+3}']
            if g % 2 == 1:
                L.append((f'buffer_store_dwordx4 {R(PKB + 4*(g//2),4)}, v{self.vH}, {SRD(rOut)}, 0 offen offset:{tt*2048 + (g//2)*512}', 'pub'))
        return L

    def ffn1_stage(self):
        P = self.P
        I = P.I
        ACC = [8, 24, 40, 56]
        BB = [72 + 4 * j for j in range(6)]
        RESK = 96
        vXB, vSB, SB = 106, 107, 116
        C = [126, 127]
        BX = [132, 136]
        T = 140
        self.vH = 164
        for r in range(10):
            I(f'v_mov_b32 v{RESK+r}, v{self.X1K+r}')
        self.RESK = RESK
        self.ximage_setup(vXB, vSB)
        self.ximage_srd(rA, X1)
        I(f's_mul_i32 s13, s{sRB}, 221184')
        I(f's_lshl_b32 s14, s{sT+2}, 12')
        I(f's_add_u32 s13, s13, s14')
        I(f's_add_u32 s13, s13, {HF}')
        I(f's_min_u32 s14, s{sT}, 4096')
        srd_off(P, rG, sLB, 's13', 's14')
        I(f's_add_u32 s13, s13, 4096')
        I(f's_min_u32 s14, s{sT+1}, 4096')
        srd_off(P, rH, sLB, 's13', 's14')
        I(f's_mul_i32 s13, s{sHG}, 276480')
        I(f's_mul_i32 s14, s{sW}, 71680')
        I(f's_add_u32 s13, s13, s14')
        I(f's_add_u32 s13, s13, {W2F}')
        I(f's_sub_u32 s14, 276480, s14')
        srd_off(P, rE, sWS, 's13', 's14')
        I(f'v_bfe_u32 v{vT0}, v{vLANE}, 4, 1')
        I(f'v_and_b32 v{self.vH}, 15, v{vLANE}')
        I(f'v_lshlrev_b32 v{self.vH}, 4, v{self.vH}')
        I(f'v_lshl_add_u32 v{self.vH}, v{vT0}, 10, v{self.vH}')
        I(f'v_lshrrev_b32 v{vT0}, 5, v{vLANE}')
        I(f'v_lshl_add_u32 v{self.vH}, v{vT0}, 8, v{self.vH}')
        self.signal(1)
        self.stamp(6)
        self.poll(1, sMASK1)
        early = self.ximage_load(rA, vSB, SB)
        self.stamp(7)
        w2 = [fragload(W1B[40], rD, 40)] + [fragload(W2R[f], rE, f) for f in range(70)]
        self.dual_pass(ACC[0:2], W1A, BB, vXB, SB, T, BX, C, early, w2)
        self.stamp(8)
        for tt in range(2):
            I(f'v_mul_f32 v{C[tt]}, 0x3fb8aa3b, v{C[tt]}')
        nb = len(BB)
        units = [(ks, tt) for tt in range(2) for ks in range(40)]
        main = []
        AH = nb - 1
        pre = [self.xfrag(BB[u % nb], vXB, *units[u]) for u in range(AH)]
        for u, (ks, tt) in enumerate(units):
            g = [MF32(ACC[2 + tt], W1B[ks], BB[u % nb], None if ks == 0 else ACC[2 + tt])]
            if u + AH < len(units):
                g.append(self.xfrag(BB[(u + AH) % nb], vXB, *units[u + AH]))
            if u % 2 == 0:
                f = 70 - len(w2)
                assert f < 45 or (tt == 1 and f - 45 <= ks)
                g.append(w2.pop(0))
            if u + 1 < len(units):
                g.append(NEED(BB[(u + 1) % nb]))
            main.append(g)
            if ks == 39:
                main.append([MF32(ACC[2 + tt], W1B[40], BX[tt], ACC[2 + tt])])
        e0 = self.mish_tile(ACC[0], 0, C, T, rG)
        e1 = self.mish_tile(ACC[1], 1, C, T, rG)
        e2 = self.mish_tile(ACC[2], 0, C, T, rH)
        e3 = self.mish_tile(ACC[3], 1, C, T, rH)
        n1 = 55
        seq = weave_cost(main[:n1], e0 + e1) + weave_cost(main[n1:], e2)
        P.run(pre)
        P.run(flat(seq))
        self.stamp(9)
        P.run(e3[:27] + [w2.pop(0)] + e3[27:54] + [w2.pop(0)] + e3[54:80] + [w2.pop(0)] + e3[80:])
        self.w2_left = w2

    def ffn2_stage(self):
        P = self.P
        I = P.I
        ACC = [[8 + 16 * ct + 4 * j for j in range(4)] for ct in range(5)]
        vS, vW, vTail, vSt = 88, 92, 106, 107
        HB = HBUF[:31] + [HBUF[31]]
        ND = 4
        HB = HBUF[:4 * ND]
        self.slot_offsets(vS)
        self.red_setup(vW)
        self.xs_setup(vTail, vSt)
        I(f's_mul_i32 s13, s{sRB}, 221184')
        I(f's_add_u32 s13, s13, {HF}')
        srd_off(P, rA, sLB, 's13', 221184)
        I(f's_mul_i32 s{sRUN}, s{sW}, {14*4096}')
        self.xs_srd(rB, sLB, X2)
        self.wq_srd()
        I(f's_cmp_eq_u32 s{sMODE}, 2')
        I(f's_cselect_b32 s{rF+2}, 0, s{rF+2}')
        self.signal(2)
        self.stamp(10)
        self.poll(2, sMASK8)

        def hload(k):
            L = [f'buffer_load_dwordx4 {R(HB[4*(k%ND)+j],4)}, v{vS+j}, {SRD(rA)}, s{sRUN} offen sc1' for j in range(4)]
            if k < 13:
                L.append(f's_add_u32 s{sRUN}, s{sRUN}, 4096')
            return L
        for k in range(2):
            P.run(hload(k))
        self.stamp(11)
        wq = 0
        P.run(hload(2))
        w2 = self.w2_left
        for k in range(13):
            side = hload(k + 3) if k + 3 < 14 else []
            other = None
            if w2 and k >= 1:
                assert (70 - len(w2)) // 5 > k + 1
                other = w2.pop(0)
            if not side:
                side = [fragload(WQR[wq + i], rF, wq + i) for i in range(4)]
                wq += 4
            n = 0
            for ct in range(5):
                for j in range(4):
                    I(MF16(ACC[ct][j], W2R[5 * k + ct], HB[4 * (k % ND) + j], k == 0))
                    if n % 5 == 1:
                        I(side.pop(0))
                        if side and side[0].startswith('s_'):
                            I(side.pop(0))
                    if n == 8 and other:
                        I(other)
                    if n == 18:
                        P.need(HB[4 * ((k + 1) % ND) + 3], 4)
                    n += 1
            assert not side
        assert not w2
        self.last_kstep(ACC, lambda ct, j: MF16(ACC[ct][j], W2R[65 + ct], HB[4 * (13 % ND) + j], False), vW, self.RESK)
        self.stamp(12)
        self.reduce_tail(ACC, 108, self.RESK, vW, 12, None, True)
        I(f's_cmp_eq_u32 s{sMODE}, 2')
        I('s_cbranch_scc1 Lout')
        self.publish_x(ACC, 12, rB, vTail, vSt, 108)
        while wq < self.WQ_EARLY:
            I(fragload(WQR[wq], rF, wq))
            wq += 1

    def out_stage(self):
        P = self.P
        I = P.I
        P.label('Lout')
        I(f's_mul_i32 s13, s{sRB}, 81920')
        I(f's_mul_i32 s14, s{sHG}, 160')
        I(f's_add_u32 s13, s13, s14')
        I(f's_mul_i32 s14, s{sW}, 20480')
        I(f's_add_u32 s13, s13, s14')
        srd(P, rG, sOUT, sOUT + 1, 2048 * 1280)
        I(f'v_and_b32 v{vT1}, 15, v{vLANE}')
        I(f'v_mul_u32_u24 v{vT1}, 1280, v{vT1}')
        I(f'v_lshrrev_b32 v{vT0}, 4, v{vLANE}')
        I(f'v_lshl_add_u32 v{vT0}, v{vT0}, 3, v{vT1}')
        for ct in range(5):
            I(f'buffer_store_dwordx2 {R(12+2*ct,2)}, v{vT0}, {SRD(rG)}, s13 offen offset:{32*ct}')
        I('s_branch Lfin')
        P.forget()

    def qkv_stage(self):
        P = self.P
        I = P.I
        ACC = [8, 24]
        BB = [72 + 4 * j for j in range(6)]
        vXB, vSB, SB = 106, 107, 116
        RS = [126, 127]
        BX = [132, 136]
        T = 140
        self.signal(3)
        self.stamp(13)
        self.poll(3, sMASK1)
        P.label('Lqkv')
        P.vm = [parse(fragload(WQR[k], rF, k)) for k in range(self.WQ_EARLY)]
        self.ximage_setup(vXB, vSB)
        self.ximage_srd(rG, X2)
        early = self.ximage_load(rG, vSB, SB)
        rest = [fragload(WQR[k], rF, k) for k in range(self.WQ_EARLY, 41)]
        early += [g for t in rest for g in ([t], [])]
        self.stamp(14)
        I(f's_lshl_b32 s13, s{sRB}, 3')
        I(f's_add_u32 s13, s13, s{sHG}')
        I(f's_mul_i32 s13, s13, 12288')
        I(f's_mul_i32 s14, s{sW}, 3072')
        I(f's_add_u32 s13, s13, s14')
        I(f's_add_u32 s13, s13, {QF}')
        srd_off(P, rB, sLBN, 's13', 3072)
        I(f's_mul_i32 s13, s{sRB}, 7168')
        I(f's_add_u32 s13, s13, {KVF}')
        I(f's_cmp_eq_u32 s{sHG}, 0')
        I(f's_cselect_b32 s14, 7168, 0')
        I(f's_cmp_lt_u32 s{sW}, 3')
        I(f's_cselect_b32 s14, s14, 0')
        srd_off(P, rC, sLBN, 's13', 's14')
        I(f's_cmp_eq_u32 s{sHG}, 1')
        I(f's_cselect_b32 s14, 7168, 0')
        srd_off(P, rD, sLBN, 's13', 's14')
        self.dual_pass(ACC, WQR, BB, vXB, SB, T, BX, RS, early)
        self.stamp(15)
        qs = 20 ** -0.5 * math.log2(math.e)
        import struct
        qsb = struct.unpack('<I', struct.pack('<f', qs))[0]
        vC0, vC1, vVW, vVR, vVS, vL8 = 40, 41, 42, 43, 44, 45
        SC = [46, 47]
        for tt in range(2):
            I(f'v_mul_f32 v{SC[tt]}, {qsb:#x}, v{RS[tt]}')
        I(f's_mov_b32 s15, 0x3f80')
        I(f's_mov_b32 s16, 0x3f803f80')
        I(f's_cmp_eq_u32 s{sHG}, 0')
        I(f's_cselect_b32 s16, s16, s15')
        I(f's_cselect_b32 s15, s15, 0')
        I(f'v_mov_b32 v{vC0}, s16')
        I(f'v_mov_b32 v{vC1}, s15')
        I(f's_cmp_eq_u32 s{sW}, 2')
        I(f's_cselect_b32 vcc_hi, -1, 0')
        I(f's_mov_b32 vcc_lo, 0')
        I(f's_lshl_b32 s15, s{sW}, 3')
        I(f's_add_u32 s16, s15, 1024')
        I(f's_cmp_eq_u32 s{sW}, 2')
        I(f's_cselect_b32 s15, 2048, s15')
        I(f's_cselect_b32 s16, 2056, s16')
        I(f's_lshl_b32 s17, s{sW}, 11')
        I(f's_add_u32 s17, s17, {L_VT}')
        I(f'v_lshrrev_b32 v{vT0}, 5, v{vLANE}')
        I(f'v_mul_u32_u24 v{vT0}, {4*144}, v{vT0}')
        I(f'v_and_b32 v{vT1}, 31, v{vLANE}')
        I(f'v_lshl_add_u32 v{vVW}, v{vT1}, 1, v{vT0}')
        I(f'v_add_u32 v{vVW}, s17, v{vVW}')
        I(f'v_and_b32 v{vT0}, 7, v{vLANE}')
        I(f'v_lshrrev_b32 v{vT1}, 3, v{vLANE}')
        I(f'v_mul_u32_u24 v{vVR}, 144, v{vT0}')
        I(f'v_lshl_add_u32 v{vVR}, v{vT1}, 4, v{vVR}')
        I(f'v_add_u32 v{vVR}, s17, v{vVR}')
        I(f'v_lshlrev_b32 v{vVS}, 9, v{vT1}')
        I(f'v_lshl_add_u32 v{vVS}, v{vT0}, 4, v{vVS}')
        I(f'v_lshlrev_b32 v{vL8}, 3, v{vLANE}')
        I(f's_lshl_b32 s18, s{sW}, 7')
        PK = 48
        for tt in range(2):
            a = ACC[tt]
            p = PK + 8 * tt
            for r in range(12, 16):
                I(f'v_mul_f32 v{a+r}, v{a+r}, v{RS[tt]}')
            for d in range(2):
                I(f'v_cvt_pk_bf16_f32 v{p+6+d}, v{a+12+2*d}, v{a+13+2*d}')
            I(f'v_cndmask_b32 v{p+6}, v{p+6}, v{vC0}, vcc')
            I(f'v_cndmask_b32 v{p+7}, v{p+7}, v{vC1}, vcc')
            I(f'buffer_store_dwordx2 {R(p+6,2)}, v{vL16}, {SRD(rC)}, s{15+tt} offen')
            I(f'ds_write_b16 v{vVW}, v{p+6} offset:{64*tt}')
            I(f'ds_write_b16_d16_hi v{vVW}, v{p+6} offset:{64*tt+144}')
            I(f'ds_write_b16 v{vVW}, v{p+7} offset:{64*tt+288}')
            I(f'ds_write_b16_d16_hi v{vVW}, v{p+7} offset:{64*tt+432}')
        I(f'ds_read_b128 {R(64,4)}, v{vVR}')
        for tt in range(2):
            a = ACC[tt]
            p = PK + 8 * tt
            for r in range(12):
                I(f'v_mul_f32 v{a+r}, v{a+r}, v{SC[tt]}')
            for d in range(6):
                I(f'v_cvt_pk_bf16_f32 v{p+d}, v{a+2*d}, v{a+2*d+1}')
            I(f'buffer_store_dwordx4 {R(p,4)}, v{vL16}, {SRD(rB)}, 0 offen offset:{1536*tt}')
            I(f'buffer_store_dwordx2 {R(p+4,2)}, v{vL8}, {SRD(rB)}, 0 offen offset:{1536*tt+1024}')
        I(f'buffer_store_dwordx4 {R(64,4)}, v{vVS}, {SRD(rD)}, s18 offen offset:3072')
        P.label('Lfin')
        self.stamp(16)
        P.label('Lend')
        I('s_endpgm')
        P.forget()

    def build(self):
        self.prologue()
        self.attention()
        self.wo_stage()
        self.ffn1_stage()
        self.ffn2_stage()
        self.qkv_stage()
        self.out_stage()
        self.fallback()
```

```python
from asmlib import *
from layout import *

OOB = 0x40000000

def srd(P, d, blo, bhi, nrec):
    if d != blo:
        P.I(f's_mov_b32 s{d}, s{blo}')
        P.I(f's_mov_b32 s{d+1}, s{bhi}')
    P.I(f's_mov_b32 s{d+2}, {nrec}')
    P.I(f's_mov_b32 s{d+3}, 0x20000')

def srd_off(P, d, blo, off, nrec):
    P.I(f's_add_u32 s{d}, s{blo}, {off}')
    P.I(f's_addc_u32 s{d+1}, s{blo+1}, 0')
    P.I(f's_mov_b32 s{d+2}, {nrec}')
    P.I(f's_mov_b32 s{d+3}, 0x20000')

def gen_prep(P, code_start, code_bytes):
    I = P.I
    P.raw('.p2align 8')
    P.raw('prep_kernel:')
    I('s_cmp_ge_u32 s2, 256')
    I('s_cbranch_scc1 Lp_end')
    I('s_load_dwordx4 s[4:7], s[0:1], 0')
    I('s_load_dwordx4 s[8:11], s[0:1], 16')
    I('s_load_dwordx2 s[12:13], s[0:1], 32')
    I('s_load_dwordx4 s[16:19], s[0:1], 48')
    I('s_load_dwordx2 s[14:15], s[0:1], 64')
    I('s_load_dwordx2 s[20:21], s[0:1], 88')
    I('v_lshrrev_b32 v1, 6, v0')
    I('v_and_b32 v2, 63, v0')
    I('v_readfirstlane_b32 s22, v1')
    I('v_lshlrev_b32 v3, 4, v2')
    I('v_lshlrev_b32 v4, 4, v0')
    P.wait(lg=0)
    srd(P, 24, 20, 21, 0x1000000)
    I('s_and_b32 s36, s2, 7')
    I('s_lshr_b32 s37, s2, 6')
    I('s_lshl_b32 s36, s36, 2')
    I('s_add_u32 s54, s36, s37')
    I('s_lshr_b32 s55, s2, 3')
    I('s_and_b32 s55, s55, 7')
    I('s_mul_i32 s36, s54, 81920')
    I('s_mul_i32 s37, s55, 160')
    I('s_add_u32 s36, s36, s37')
    I('s_mul_i32 s37, s22, 20480')
    I('s_add_u32 s36, s36, s37')
    srd(P, 56, 4, 5, 2048 * 1280)
    I('v_and_b32 v136, 15, v2')
    I('v_lshrrev_b32 v137, 4, v2')
    I('v_mul_u32_u24 v138, 1280, v136')
    I('v_lshl_add_u32 v138, v137, 3, v138')
    for ct in range(5):
        I(f'buffer_load_dwordx2 v[{140+2*ct}:{141+2*ct}], v138, s[56:59], s36 offen offset:{32*ct}')
    I('s_cmp_lt_u32 s2, 86')
    I('s_cbranch_scc1 Lp_t1')
    I('s_cmp_lt_u32 s2, 234')
    I('s_cbranch_scc1 Lp_t2')
    I('s_sub_u32 s23, s2, 234')
    I('s_cmp_ge_u32 s23, 16')
    I('s_cbranch_scc1 Lp_warm')
    I('s_lshl_b32 s23, s23, 12')
    I(f's_add_u32 s23, s23, {FLG}')
    for r in range(8, 12):
        I(f'v_mov_b32 v{r}, 0')
    I('buffer_store_dwordx4 v[8:11], v4, s[24:27], s23 offen')
    I('s_branch Lp_warm')
    P.forget()
    P.label('Lp_t2')
    I('v_and_b32 v5, 15, v2')
    I('v_lshrrev_b32 v6, 4, v2')
    I('s_cmp_lt_u32 s2, 194')
    I('s_cbranch_scc0 Lp_wo')
    I('s_sub_u32 s23, s2, 86')
    I('s_lshl_b32 s23, s23, 2')
    I('s_add_u32 s23, s23, s22')
    I('s_mul_i32 s36, s23, 1214')
    I('s_lshr_b32 s36, s36, 16')
    I('s_mul_i32 s37, s36, 54')
    I('s_sub_u32 s37, s23, s37')
    I('s_mul_i32 s38, s23, 5120')
    I(f's_add_u32 s38, s38, {W2F}')
    srd(P, 28, 14, 15, 1728 * 1280)
    I('s_lshl_b32 s37, s37, 5')
    I('v_lshrrev_b32 v7, 1, v6')
    I('v_lshlrev_b32 v7, 4, v7')
    I('v_and_b32 v8, 1, v6')
    I('v_lshl_add_u32 v7, v8, 2, v7')
    I('v_add_u32 v7, s37, v7')
    I('v_mov_b32 v8, 8')
    I('s_branch Lp_t2go')
    P.label('Lp_wo')
    I('s_sub_u32 s23, s2, 194')
    I('s_lshl_b32 s23, s23, 2')
    I('s_add_u32 s23, s23, s22')
    I('s_mul_i32 s36, s23, 3277')
    I('s_lshr_b32 s36, s36, 16')
    I('s_mul_i32 s37, s36, 20')
    I('s_sub_u32 s37, s23, s37')
    I('s_mul_i32 s38, s23, 5120')
    I(f's_add_u32 s38, s38, {WOF}')
    srd(P, 28, 12, 13, 640 * 1280)
    I('s_mul_i32 s39, s37, 52')
    I('s_lshr_b32 s39, s39, 8')
    I('s_mul_i32 s40, s39, 5')
    I('s_sub_u32 s40, s37, s40')
    I('s_lshl_b32 s40, s40, 2')
    I('s_mul_i32 s39, s39, 160')
    I('v_add_u32 v9, s40, v6')
    I('v_cmp_le_u32 vcc, 10, v9')
    I('v_mov_b32 v10, 10')
    I('v_mov_b32 v12, 80')
    I('v_cndmask_b32 v10, 0, v10, vcc')
    I('v_cndmask_b32 v12, 0, v12, vcc')
    I('v_sub_u32 v9, v9, v10')
    I('v_lshrrev_b32 v10, 1, v9')
    I('v_mul_u32_u24 v10, 20, v10')
    I('v_and_b32 v11, 1, v9')
    I('v_lshl_add_u32 v10, v11, 2, v10')
    I('v_subrev_u32 v11, 8, v9')
    I('v_mul_u32_u24 v11, 40, v11')
    I('v_add_u32 v11, 16, v11')
    I('v_cmp_le_u32 vcc, 8, v9')
    I('v_mov_b32 v8, 8')
    I('v_mov_b32 v13, 20')
    I('v_cndmask_b32 v7, v10, v11, vcc')
    I('v_cndmask_b32 v8, v8, v13, vcc')
    I('v_add_u32 v7, v7, v12')
    I('v_add_u32 v7, s39, v7')
    P.label('Lp_t2go')
    I('s_mul_i32 s36, s36, 160')
    I('s_movk_i32 s41, 1280')
    I('v_mul_lo_u32 v7, v7, s41')
    I('v_mul_lo_u32 v8, v8, s41')
    I('v_lshl_add_u32 v7, v5, 1, v7')
    I('v_add_u32 v8, v7, v8')
    for t in range(8):
        I(f'v_add_u32 v{16+t}, {1280*(t%4)}, v{7 if t < 4 else 8}')
    for ct in range(5):
        for t in range(8):
            I(f'buffer_load_ushort v{32+8*ct+t}, v{16+t}, s[28:31], s36 offen offset:{32*ct}')
    for ct in range(5):
        for d in range(4):
            I(f'v_lshl_or_b32 v{80+4*ct+d}, v{32+8*ct+2*d+1}, 16, v{32+8*ct+2*d}')
        if ct < 4:
            I(f'buffer_store_dwordx4 v[{80+4*ct}:{83+4*ct}], v3, s[24:27], s38 offen offset:{1024*ct}')
        else:
            I('s_add_u32 s38, s38, 4096')
            I(f'buffer_store_dwordx4 v[{80+4*ct}:{83+4*ct}], v3, s[24:27], s38 offen')
    I('s_branch Lp_warm')
    P.forget()
    P.label('Lp_t1')
    I('v_and_b32 v5, 31, v2')
    I('v_lshrrev_b32 v6, 5, v2')
    I('s_mul_i32 s42, s22, 160')
    I('s_cmp_lt_u32 s2, 54')
    I('s_cbranch_scc0 Lp_wq')
    I('s_mov_b32 s41, 3456')
    I('s_lshl_b32 s36, s2, 6')
    I(f's_mul_i32 s38, s2, {TILE}')
    I(f's_add_u32 s38, s38, {W1F}')
    srd(P, 28, 16, 17, 640 * 3456)
    srd(P, 32, 18, 19, 3456)
    I('v_lshlrev_b32 v9, 1, v5')
    I('s_mov_b32 s43, 2')
    I('s_branch Lp_t1go')
    P.label('Lp_wq')
    I('s_sub_u32 s23, s2, 54')
    I('s_movk_i32 s41, 1280')
    I('s_mul_i32 s36, s23, 40')
    I(f's_mul_i32 s38, s23, {TILE}')
    I(f's_add_u32 s38, s38, {WQF}')
    srd(P, 28, 6, 7, 640 * 1280)
    srd(P, 32, 18, 19, 0)
    I('v_lshlrev_b32 v9, 1, v5')
    I(f'v_mov_b32 v10, {OOB}')
    I('v_cmp_gt_u32 vcc, 20, v5')
    I('s_lshr_b32 s43, s23, 2')
    I('s_and_b32 s44, s23, 3')
    I('v_cndmask_b32 v9, v10, v9, vcc')
    P.label('Lp_t1go')
    I('v_lshlrev_b32 v30, 1, v5')
    I('buffer_load_ushort v31, v30, s[32:35], s36 offen')
    I('v_lshlrev_b32 v7, 2, v6')
    I('v_mul_lo_u32 v8, v7, s41')
    I('v_add_u32 v16, v8, v9')
    I('v_add_u32 v128, v8, v16')
    I('s_mul_i32 s45, s41, 13')
    for t in range(1, 8):
        I(f'v_add_u32 v{16+t}, {"s45" if t == 4 else "s41"}, v{15+t}')
        I(f'v_add_u32 v{128+t}, s41, v{127+t}')
    krow = lambda k: 80 * (k // 5) + (64 if k % 5 == 4 else 32 * ((k % 5) // 2) + 8 * (k % 5 % 2))
    for k in range(10):
        I(f's_add_u32 s46, s42, {krow(k)}')
        I('s_mul_i32 s46, s46, s41')
        I('s_add_u32 s46, s46, s36')
        for t in range(8):
            I(f'buffer_load_ushort v{40+8*k+t}, v{(128 if k % 5 == 4 else 16)+t}, s[28:31], s46 offen')
    I('s_cmp_ge_u32 s43, 2')
    I('s_cbranch_scc1 Lp_nokv')
    I('s_cmp_eq_u32 s43, 0')
    I('s_cselect_b32 s48, s8, s10')
    I('s_cselect_b32 s49, s9, s11')
    I('s_mov_b32 s50, 25600')
    I('s_mov_b32 s51, 0x20000')
    I('s_lshl_b32 s44, s44, 3')
    I('v_subrev_u32 v10, 24, v5')
    I('v_add_u32 v10, s44, v10')
    I('v_cmp_le_u32 vcc, 24, v5')
    I('v_cmp_gt_u32 s[52:53], 20, v10')
    I('v_mul_u32_u24 v11, 40, v7')
    I('v_lshl_add_u32 v13, v11, 1, 0')
    I('v_lshl_add_u32 v11, v10, 1, v11')
    I('v_lshl_add_u32 v13, v10, 1, v13')
    I('s_and_b64 s[52:53], s[52:53], vcc')
    I('s_mov_b64 exec, s[52:53]')
    I('s_cbranch_execz Lp_kvdone')
    for k in range(10):
        I(f's_add_u32 s46, s42, {krow(k)}')
        I('s_mul_i32 s46, s46, 40')
        for t in range(8):
            if k % 5 == 4:
                P.I(f'buffer_load_ushort v{40+8*k+t}, v13, s[48:51], s46 offen offset:{40*t}', nowaw=True)
            else:
                P.I(f'buffer_load_ushort v{40+8*k+t}, v11, s[48:51], s46 offen offset:{40*(t if t < 4 else t + 12)}', nowaw=True)
    P.label('Lp_kvdone')
    I('s_mov_b64 exec, -1')
    P.label('Lp_nokv')
    P.drain()
    I('v_mov_b32 v12, 0')
    I('s_mov_b32 s47, 0x3f803f80')
    I('s_mul_i32 s46, s22, 10240')
    I('s_add_u32 s46, s46, s38')
    for k in range(10):
        b = 120 + 4 * (k % 2)
        for d in range(4):
            I(f'v_lshl_or_b32 v{b+d}, v{40+8*k+2*d+1}, 16, v{40+8*k+2*d}')
        for d in range(4):
            I(f'v_dot2_f32_bf16 v12, v{b+d}, s47, v12')
        I(f'buffer_store_dwordx4 v[{b}:{b+3}], v3, s[24:27], s46 offen offset:{1024*(k%4)}')
        if k % 4 == 3:
            I('s_add_u32 s46, s46, 4096')
    I('v_mov_b32 v13, v12')
    I('v_permlane32_swap_b32 v12, v13')
    I('v_add_f32 v12, v12, v13')
    I('s_lshl_b32 s46, s22, 7')
    I('v_lshl_add_u32 v14, v5, 2, s46')
    I('ds_write_b32 v14, v12')
    P.wait(lg=0)
    I('s_barrier')
    I('s_cmp_lg_u32 s22, 0')
    I('s_cbranch_scc1 Lp_warm')
    I('v_lshlrev_b32 v14, 2, v5')
    I('ds_read_b32 v16, v14')
    I('ds_read_b32 v17, v14 offset:128')
    I('ds_read_b32 v18, v14 offset:256')
    I('ds_read_b32 v19, v14 offset:384')
    I('v_add_f32 v16, v16, v17')
    I('v_add_f32 v18, v18, v19')
    I('v_add_f32 v16, v16, v18')
    I('v_cvt_pk_bf16_f32 v20, v16, v16')
    I('v_and_b32 v17, 0xffff0000, v20')
    I('v_sub_f32 v17, v16, v17')
    I('v_cvt_pk_bf16_f32 v17, v17, v17')
    I('v_and_b32 v17, 0xffff, v17')
    I('v_lshl_or_b32 v21, v31, 16, v17')
    I('v_mov_b32 v22, v31')
    I('v_mov_b32 v23, 0')
    I('v_cmp_eq_u32 vcc, 0, v6')
    I(f's_add_u32 s38, s38, {40*1024}')
    I('v_cndmask_b32 v20, 0, v20, vcc')
    I('v_cndmask_b32 v21, 0, v21, vcc')
    I('v_cndmask_b32 v22, 0, v22, vcc')
    I('buffer_store_dwordx4 v[20:23], v3, s[24:27], s38 offen')
    P.forget()
    P.label('Lp_warm')
    P.drain()
    I('v_mov_b32 v150, 0')
    I('v_mov_b32 v151, 0')
    I('s_mov_b32 s47, 0x3f803f80')
    for r in range(10):
        I(f'v_dot2_f32_bf16 v150, v{140+r}, s47, v150')
        I(f'v_dot2_f32_bf16 v151, v{140+r}, v{140+r}, v151')
    I('s_lshl_b32 s36, s54, 2')
    I('s_add_u32 s36, s36, s22')
    I('s_lshl_b32 s36, s36, 3')
    I('s_add_u32 s36, s36, s55')
    I('s_mul_i32 s37, s36, 2560')
    I('s_lshl_b32 s36, s36, 7')
    I(f's_add_u32 s36, s36, {STT}')
    srd_off(P, 56, 20, LAY0 - LSTR + X2, 0x300000)
    I('v_lshrrev_b32 v138, 1, v137')
    I('v_lshlrev_b32 v138, 8, v138')
    I('v_lshl_add_u32 v138, v136, 4, v138')
    I('v_and_b32 v139, 1, v137')
    I('v_lshl_add_u32 v138, v139, 3, v138')
    I('buffer_store_dwordx4 v[140:143], v3, s[56:59], s37 offen')
    I('buffer_store_dwordx4 v[144:147], v3, s[56:59], s37 offen offset:1024')
    I('buffer_store_dwordx2 v[148:149], v138, s[56:59], s37 offen offset:2048')
    for sw in ('16', '32'):
        for r in (150, 151):
            I(f'v_mov_b32 v{r+2}, v{r}')
        for r in (150, 151):
            I(f'v_permlane{sw}_swap_b32 v{r}, v{r+2}')
        for r in (150, 151):
            I(f'v_add_f32 v{r}, v{r}, v{r+2}')
    I('v_lshlrev_b32 v136, 3, v136')
    I('v_lshl_add_u32 v136, v137, 30, v136')
    I('buffer_store_dwordx2 v[150:151], v136, s[56:59], s36 offen')
    I('s_lshr_b32 s37, s2, 3')
    if code_start:
        I('s_getpc_b64 s[32:33]')
        P.label('Lp_pc')
        I(f's_add_u32 s32, s32, {code_start}-Lp_pc')
        I('s_addc_u32 s33, s33, 0')
        I(f's_mov_b32 s34, {code_bytes}')
        I('s_mov_b32 s35, 0x20000')
        I('s_lshl_b32 s37, s37, 12')
        I('buffer_load_dwordx4 v[44:47], v4, s[32:35], s37 offen')
    P.label('Lp_end')
    I('s_endpgm')
    P.forget()
```

```python
import sys, os
sys.path.insert(0, os.path.dirname(os.path.abspath(__file__)))
from asmlib import *
from layout import *
from prep import gen_prep
from main import Gen

NAME = 'interleave_layers__grouped_kv_mqa__dense_activation_mish__prompt'

def kd(name, vgpr, accum):
    return f'''.p2align 6
.amdhsa_kernel {name}
  .amdhsa_next_free_vgpr {vgpr}
  .amdhsa_next_free_sgpr 102
  .amdhsa_accum_offset {accum}
  .amdhsa_group_segment_fixed_size 0
  .amdhsa_kernarg_size 96
  .amdhsa_user_sgpr_count 2
  .amdhsa_user_sgpr_kernarg_segment_ptr 1
  .amdhsa_system_sgpr_workgroup_id_x 1
.end_amdhsa_kernel
'''

def build(dbg=None):
    ref = open(f'cdna_kernels/{NAME}.s.ref').read().splitlines() if os.path.exists(f'cdna_kernels/{NAME}.s.ref') else []
    hdr = [l for l in ref if l.startswith(';   offset') or l.startswith('; Kernarg')]
    hdr += ['; Generated by my own generator (gen/*.py): weight re-layout, QKV, then one fused launch per layer.',
            '; @launch kernel=prep_kernel grid=(256,1,1) block=(256,1,1) lds=512',
            f'; @launch kernel=qkv_kernel grid=(256,1,1) block=(256,1,1) lds={LDS_BYTES}',
            f'; @launch kernel=layer1_kernel grid=(256,1,1) block=(256,1,1) lds={LDS_BYTES}',
            f'; @launch kernel=layer2_kernel grid=(256,1,1) block=(256,1,1) lds={LDS_BYTES}']
    P = Prog()
    gen_prep(P, 'layer2_kernel', 'Lcode_end-layer2_kernel')
    g = Gen(P, dbg)
    g.build()
    P.label('Lcode_end')
    out = '\n'.join(hdr) + '\n.amdgcn_target "amdgcn-amd-amdhsa--gfx950"\n.text\n'
    for k in ('prep_kernel', 'qkv_kernel', 'layer1_kernel', 'layer2_kernel'):
        out += f'.globl {k}\n.type {k},@function\n'
    out += P.text()
    out += '.section .rodata,"a"\n' + kd('prep_kernel', 160, 160)
    for k in ('qkv_kernel', 'layer1_kernel', 'layer2_kernel'):
        out += kd(k, 512, 256)
    return out, P

if __name__ == '__main__':
    dbg = {a: True for a in sys.argv[2:]}
    out, P = build(dbg)
    if dbg.get('plainst'):
        import re
        out = '\n'.join(re.sub(r' sc1$', '', l) if 'buffer_store' in l else l for l in out.split('\n'))
    path = sys.argv[1] if len(sys.argv) > 1 else f'cdna_kernels/{NAME}.s'
    open(path, 'w').write(out)
    print('wrote', path, len(out), 'bytes; nops', P.nnop, P.count)
```

```python
WQF = 0x000000
W1F = 0x200000
W2F = 0x500000
WOF = 0x800000
FLG = 0xA00000
XS = 0x1000000
STT = 0x280000
HF = 0x1400000
LAY0 = 0x2000000
LSTR = 0x400000
QF = 0x000000
KVF = 0x300000
TILE = 41 * 1024

L_WO = 0
L_X = 0
L_EX = 81920
L_RS = 81920 + 1024
L_VT = 84 * 1024
L_RED = 102400
L_CK = L_RED + 24576
L_MX = L_RED + 32768
LDS_BYTES = 163840
```

```python
from asmlib import *
from layout import *
from prep import srd, srd_off, OOB
import math

sMODE, sWS, sOUT, sBLK, sRB, sHG, sW = 3, 4, 6, 8, 10, 11, 12
sLB, sLBN = 20, 22
rA, rB, rC, rD, rE, rFL, rF, rG, rH = 24, 28, 32, 36, 40, 44, 48, 52, 56
sK8 = 60
sKV, sRUN, sFB, sMASK8, sMASK1, sFLO = 74, 75, 76, 77, 78, 79
sP0, sP1 = 80, 81
sFAST, sLN2 = 73, 92
sXO = 70
sT = 82
vLANE, vL16, vL16B, vSIG, vL4, vIDX, vT0, vT1 = 0, 1, 2, 3, 4, 5, 6, 7
S_ = [8, 24, 40]
Q16 = [56 + 4 * q for q in range(4)]
Q8 = [72 + 2 * q for q in range(4)]
O_ = [80 + 16 * q for q in range(4)]
K16 = [144 + 4 * j for j in range(3)]
K8P = [156 + 4 * j for j in range(2)]
V_ = [164 + 8 * j for j in range(3)]
W1A = [188 + 4 * k for k in range(17)] + [256 + 4 * k for k in range(24)]
W1B = [256 + 96 + 4 * k for k in range(40)] + [168]
W2R = [172 + 4 * k for k in range(4)] + W1A + W1B[:25]
HBUF = W1B[25:41] + [108 + 4 * k for k in range(15)] + [56]
WQR = W2R[:41]
assert len(W2R) == 70 and len(HBUF) == 32

SRD = lambda r: f's[{r}:{r+3}]'
MF32 = lambda d, a, b, c=None: f'v_mfma_f32_32x32x16_bf16 {R(d,16)}, {R(a,4)}, {R(b,4)}, {"0" if c is None else R(c,16)}'
MF8 = lambda d, a, b: f'v_mfma_f32_32x32x8_bf16 {R(d,16)}, {R(a,2)}, {R(b,2)}, {R(d,16)}'
SMF = lambda d, a, b: f'v_smfmac_f32_32x32x32_bf16 {R(d,16)}, {R(a,4)}, {R(b,8)}, v{vIDX}'
MF16 = lambda d, a, b, first: f'v_mfma_f32_16x16x32_bf16 {R(d,4)}, {R(a,4)}, {R(b,4)}, {"0" if first else R(d,4)}'


def fragload(dst, srd_, f, extra=''):
    so = '0' if f < 8 else f's{sK8 + f // 8}'
    vo = vL16B if (f % 8) >= 4 else vL16
    return f'buffer_load_dwordx4 {R(dst,4)}, v{vo}, {SRD(srd_)}, {so} offen offset:{(f % 4) * 1024}{extra}'


class Gen:
    def __init__(self, P, dbg=None):
        self.P = P
        self.dbg = dbg or {}
        self.npoll = 0

    def signal(self, stage):
        P = self.P
        P.wait_tag('pub')
        P.I(f's_cmp_lg_u32 s{sFAST}, 0')
        P.I(f's_cbranch_scc1 Lsigf{stage}')
        vm = list(P.vm)
        P.I('buffer_wbl2 sc1')
        P.I('s_waitcnt vmcnt(0)')
        P.I(f'buffer_store_dword v{vL16B}, v{vSIG}, {SRD(rFL)}, s{sFLO} offen offset:{stage*128} sc1')
        P.I(f's_branch Lsigd{stage}')
        P.label(f'Lsigf{stage}')
        P.vm = vm
        P.I(f'buffer_store_dword v{vL16B}, v{vSIG}, {SRD(rFL)}, s{sFLO} offen offset:{stage*128}')
        P.label(f'Lsigd{stage}')

    def poll(self, stage, smask):
        P = self.P
        n = self.npoll
        self.npoll += 1
        P.I(f's_mov_b32 s{sP0}, 0x400000')
        P.label(f'Lpoll{n}')
        P.I(f'buffer_load_dword v{vT0}, v{vL4}, {SRD(rFL)}, s{sFLO} offen offset:{stage*128} sc1')
        P.I(f's_sub_u32 s{sP0}, s{sP0}, 1')
        P.I(f's_cbranch_scc1 Lpolled{n}')
        P.I('s_waitcnt vmcnt(0)')
        P.I(f'v_cmp_ne_u32 vcc, 0, v{vT0}')
        P.I(f's_and_b32 s{sP1}, vcc_lo, s{smask}')
        P.I(f's_cmp_eq_u32 s{sP1}, s{smask}')
        P.I(f's_cbranch_scc0 Lpoll{n}')
        P.label(f'Lpolled{n}')
        P.I(f's_cmp_lg_u32 s{sFAST}, 0')
        P.I(f's_cbranch_scc1 Lacq{n}')
        P.I('buffer_inv sc1')
        P.I('s_waitcnt vmcnt(0)')
        P.label(f'Lacq{n}')
        P.forget()

    def stamp(self, k):
        if not self.dbg.get('stamps'):
            return
        P = self.P
        P.I('s_memtime s[100:101]')
        P.I('s_waitcnt lgkmcnt(0)')
        P.I(f'v_mov_b32 v{vT1}, s100')
        P.I(f'buffer_store_dword v{vT1}, v{vSIG}, s[96:99], s95 offen offset:{k*128}')
        P.I('s_memrealtime s[100:101]')
        P.I('s_waitcnt lgkmcnt(0)')
        P.I(f'v_mov_b32 v{vT1}, s100')
        P.I(f'buffer_store_dword v{vT1}, v{vSIG}, s[96:99], s94 offen offset:{k*128}')

    def prologue(self):
        P = self.P
        I = P.I
        for name, mode in (('qkv_kernel', 0), ('layer1_kernel', 1), ('layer2_kernel', 2)):
            P.raw('.p2align 8')
            P.raw(f'{name}:')
            I(f's_mov_b32 s{sMODE}, {mode}')
            if mode != 2:
                I('s_branch Lentry')
        P.label('Lentry')
        I('s_cmp_ge_u32 s2, 256')
        I('s_cbranch_scc1 Lend')
        I(f's_load_dwordx2 s[{sWS}:{sWS+1}], s[0:1], 88')
        I(f's_load_dwordx2 s[{sOUT}:{sOUT+1}], s[0:1], 72')
        I(f'v_lshrrev_b32 v{vT0}, 6, v0')
        I(f'v_and_b32 v{vLANE}, 63, v0')
        I(f'v_readfirstlane_b32 s{sW}, v{vT0}')
        I(f'v_lshlrev_b32 v{vL16}, 4, v{vLANE}')
        I(f'v_add_u32 v{vL16B}, 4096, v{vL16}')
        I(f's_and_b32 s13, s2, 7')
        I(f's_lshr_b32 s14, s2, 6')
        I(f's_lshl_b32 s13, s13, 2')
        I(f's_add_u32 s{sRB}, s13, s14')
        I(f's_lshr_b32 s{sHG}, s2, 3')
        I(f's_and_b32 s{sHG}, s{sHG}, 7')
        I(f's_mul_i32 s14, s{sMODE}, {LSTR}')
        I(f's_add_u32 s14, s14, {LAY0 - LSTR}')
        for j in range(1, 10):
            I(f's_mov_b32 s{sK8+j}, {8192*j}')
        I(f's_lshl_b32 s{sBLK}, s{sRB}, 2')
        I(f's_add_u32 s{sBLK}, s{sBLK}, s{sW}')
        I(f's_lshl_b32 s{sBLK}, s{sBLK}, 3')
        I(f's_add_u32 s{sBLK}, s{sBLK}, s{sHG}')
        P.wait(lg=0)
        I(f's_add_u32 s{sLB}, s{sWS}, s14')
        I(f's_addc_u32 s{sLB+1}, s{sWS+1}, 0')
        I(f's_add_u32 s{sLBN}, s{sLB}, {LSTR}')
        I(f's_addc_u32 s{sLBN+1}, s{sLB+1}, 0')
        if self.dbg.get('stamps'):
            self.late_setup()
            I(f's_lshl_b32 s13, s{sMODE}, 20')
            I(f's_add_u32 s13, s13, 0xB00000')
            srd_off(P, 96, sWS, 's13', 0x100000)
            I(f's_lshl_b32 s95, s{sRB}, 12')
            I('s_add_u32 s94, s95, 0x40000')
            self.stamp(0)
        I(f's_cmp_lg_u32 s{sMODE}, 0')
        I('s_cbranch_scc1 Lattn')
        self.wq_srd()
        for k in range(self.WQ_EARLY):
            I(fragload(WQR[k], rF, k))
        I(f's_mul_i32 s13, s{sRB}, 221184')
        I(f's_add_u32 s13, s13, {HF}')
        srd_off(P, rE, sWS, 's13', 221184)
        I(f's_lshl_b32 s18, s{sHG}, 2')
        I(f's_add_u32 s18, s18, s{sW}')
        I(f's_mul_i32 s{sT+8}, s18, 6912')
        I('s_branch Lqkv')
        P.forget()

    WQ_EARLY = 20

    def late_setup(self):
        P = self.P
        I = P.I
        I(f'v_lshrrev_b32 v{vT1}, 5, v{vLANE}')
        I(f'v_lshlrev_b32 v{vL4}, 2, v{vLANE}')
        I(f'v_lshl_add_u32 v{vL4}, v{vT1}, 30, v{vL4}')
        I(f'v_mov_b32 v{vIDX}, 0xdddddddd')
        I(f's_mov_b32 s{sFB}, 0')
        I(f's_lshl_b32 s13, s{sW}, 3')
        I(f's_lshl_b32 s{sMASK8}, 0xff, s13')
        I(f's_lshl_b32 s{sMASK1}, 0x11111111, s{sW}')
        I(f's_lshl_b32 s13, s{sHG}, 2')
        I(f's_add_u32 s13, s13, s{sW}')
        I(f's_lshl_b32 s13, s13, 2')
        I(f'v_mov_b32 v{vSIG}, {OOB}')
        I(f'v_mov_b32 v{vT1}, s13')
        I(f'v_cmp_eq_u32 vcc, 0, v{vLANE}')
        I(f'v_cndmask_b32 v{vSIG}, v{vSIG}, v{vT1}, vcc')
        I(f's_lshr_b32 s15, s{sMODE}, 1')
        I(f's_lshl_b32 s15, s15, 5')
        I(f's_add_u32 s15, s15, s{sRB}')
        I(f's_lshl_b32 s{sFLO}, s15, 10')
        srd_off(P, rFL, sWS, FLG, 65536)

    def wq_srd(self):
        P = self.P
        P.I(f's_lshl_b32 s13, s{sHG}, 2')
        P.I(f's_add_u32 s13, s13, s{sW}')
        P.I(f's_mul_i32 s13, s13, {TILE}')
        srd_off(P, rF, sWS, 's13', TILE)

    def kv_loads(self, i):
        e, kb, vb = i % 2, K16[i % 3], V_[i % 3]
        L = []
        if e == 0:
            L.append(f'buffer_load_dwordx4 {R(vb,4)}, v{vL16}, {SRD(rB)}, s{sKV} offen offset:3072')
            L.append(f'buffer_load_dwordx4 {R(vb+4,4)}, v{vL16B}, {SRD(rB)}, s{sKV} offen')
            L.append(f'buffer_load_dwordx4 {R(K8P[(i//2)%2],4)}, v{vL16}, {SRD(rB)}, s{sKV} offen offset:2048')
        else:
            L.append(f'buffer_load_dwordx4 {R(vb,4)}, v{vL16B}, {SRD(rB)}, s{sKV} offen offset:1024')
            L.append(f'buffer_load_dwordx4 {R(vb+4,4)}, v{vL16B}, {SRD(rB)}, s{sKV} offen offset:2048')
        L.append(f'buffer_load_dwordx4 {R(kb,4)}, v{vL16}, {SRD(rB)}, s{sKV} offen offset:{1024*e}')
        return L

    def attention(self):
        P = self.P
        I = P.I
        P.label('Lattn')
        I(f's_lshl_b32 s13, s{sRB}, 3')
        I(f's_add_u32 s13, s13, s{sHG}')
        I(f's_mul_i32 s13, s13, 12288')
        I(f's_add_u32 s13, s13, {QF}')
        srd_off(P, rA, sLB, 's13', 12288)
        srd_off(P, rB, sLB, KVF, 32 * 7168)
        I(f's_and_b32 s13, s{sW}, 1')
        I(f's_mul_i32 s{sKV}, s13, {16*7168}')
        for t in self.kv_loads(0)[::-1]:
            I(t)
        I(f's_mul_i32 s14, s{sW}, 3072')
        I(f's_xor_b32 s15, s{sW}, 1')
        I(f's_mul_i32 s15, s15, 3072')
        I(f'v_lshlrev_b32 v{vT0}, 3, v{vLANE}')
        for q in range(4):
            so = 's15' if q < 2 else 's14'
            I(f'buffer_load_dwordx4 {R(Q16[q],4)}, v{vL16}, {SRD(rA)}, {so} offen offset:{(q%2)*1536}')
            I(f'buffer_load_dwordx2 {R(Q8[q],2)}, v{vT0}, {SRD(rA)}, {so} offen offset:{(q%2)*1536+1024}')
        for t in self.kv_loads(1):
            I(t)
        I(f's_lshr_b32 s13, s2, 3')
        I(f's_mul_i32 s13, s13, 7168')
        I(f's_mul_i32 s14, s{sW}, 1792')
        I(f's_add_u32 s13, s13, s14')
        I(f'buffer_load_dwordx4 {R(S_[2],4)}, v{vL16}, {SRD(rB)}, s13 offen')
        I(f'buffer_load_dwordx4 {R(S_[2]+4,4)}, v{vL16}, {SRD(rB)}, s13 offen offset:1024')
        self.late_setup()
        I(f's_getreg_b32 s{sFAST}, hwreg(HW_REG_XCC_ID, 0, 4)')
        I(f's_add_u32 s{sFAST}, s{sFAST}, 1')
        I(f'v_mov_b32 v{vT1}, s{sFAST}')
        I(f'buffer_store_dword v{vT1}, v{vSIG}, {SRD(rFL)}, s{sFLO} offen offset:512 sc1')
        I(f's_mov_b32 s{sLN2}, 0x3f317218')
        I(f's_mov_b32 s{sLN2+1}, 0x3f317218')
        I(f's_mul_i32 s13, s{sHG}, 7')
        I(f's_lshl_b32 s14, s{sW}, 1')
        I(f's_add_u32 s13, s13, s14')
        I(f's_cmp_lt_u32 s13, 54')
        I(f's_cselect_b32 s{sT}, {TILE}, 0')
        I(f's_add_u32 s15, s13, 1')
        I(f's_cmp_lt_u32 s15, 54')
        I(f's_cselect_b32 s{sT+1}, {TILE}, 0')
        I(f's_cmp_lt_u32 s{sW}, 3')
        I(f's_cselect_b32 s{sT+1}, s{sT+1}, 0')
        I(f's_mov_b32 s{sT+2}, s13')
        I(f's_mul_i32 s14, s13, {TILE}')
        I(f's_add_u32 s14, s14, {W1F}')
        srd_off(P, rC, sWS, 's14', f's{sT}')
        I(f's_add_u32 s14, s14, {TILE}')
        srd_off(P, rD, sWS, 's14', f's{sT+1}')
        I(f's_mul_i32 s14, s{sHG}, 102400')
        I(f's_add_u32 s14, s14, {WOF}')
        srd_off(P, rE, sWS, 's14', 102400)
        P.label('Lattn_main')
        I(f's_mul_i32 m0, s{sW}, 25600')
        for r in range(64):
            I(f'v_mov_b32 v{O_[0]+r}, 0')
        pre = []
        for k in range(41):
            pre.append([fragload(W1A[k], rC, k)])
        for k in range(25):
            g = []
            if k and k % 4 == 0:
                g.append('s_add_u32 m0, m0, 4096')
            g.append((f'buffer_load_dwordx4 v{vL16}, {SRD(rE)}, m0 offen offset:{(k%4)*1024} lds', 'wo'))
            pre.append(g)
        for k in range(40):
            pre.append([fragload(W1B[k], rD, k)])
        NW = 128
        extra = [[] for _ in range(NW)]
        for i in range(30):
            g = []
            if i % 2 == 0:
                g.append(f's_add_u32 s{sKV}, s{sKV}, 7168')
            if not self.dbg.get('nokv'):
                extra[4 * i + 1] += g + self.kv_loads(i + 2)
        if self.dbg.get('nopre'):
            pre = []
        slots = [n for n in range(2, 120) if n % 4 in (0, 3)]
        per = -(-len(pre) // len(slots))
        for k, g in enumerate(pre):
            extra[slots[k // per]] += g

        def M1(n):
            return MF32(S_[n % 3], K16[(n // 4) % 3], Q16[n % 4])

        def M2(n):
            i = n // 4
            return MF8(S_[n % 3], K8P[(i // 2) % 2] + 2 * (i % 2), Q8[n % 4])

        def P1(n):
            return SMF(O_[n % 4], V_[(n // 4) % 3], S_[n % 3])

        def P2(n):
            return SMF(O_[n % 4], V_[(n // 4) % 3] + 4, S_[n % 3] + 8)

        sO1, sO2, sXW, sXR = sT + 3, sT + 6, sT + 7, sT + 9
        free = [f's_mul_i32 s{sXW}, s{sW}, 6144', f's_add_u32 s{sXW}, s{sXW}, {L_RED}',
                f's_xor_b32 s{sXR}, s{sW}, 1', f's_mul_i32 s{sXR}, s{sXR}, 6144', f's_add_u32 s{sXR}, s{sXR}, {L_RED}',
                f's_and_b32 s13, s{sHG}, 1', f's_mul_i32 s13, s13, 10', f's_lshl_b32 s14, s{sW}, 1',
                f's_add_u32 s14, s14, s13', f's_lshr_b32 s15, s{sW}, 1', f's_add_u32 s15, s15, s13',
                f's_add_u32 s15, s15, 8', f's_lshr_b32 s16, s{sHG}, 1', f's_mul_i32 s16, s16, {5*4096}',
                f's_lshr_b32 s17, s14, 2', f's_lshl_b32 s17, s17, 12', f's_and_b32 s14, s14, 3',
                f's_lshl_b32 s14, s14, 8', f's_add_u32 s14, s14, s17', f's_add_u32 s{sO1}, s14, s16',
                f's_lshr_b32 s17, s15, 2', f's_lshl_b32 s17, s17, 12', f's_and_b32 s15, s15, 3',
                f's_lshl_b32 s15, s15, 8', f's_add_u32 s15, s15, s17', f's_add_u32 s15, s15, s16',
                f's_and_b32 s17, s{sW}, 1', f's_lshl_b32 s17, s17, 3', f's_add_u32 s{sO2}, s15, s17',
                f's_mul_i32 s16, s{sRB}, 221184', f's_add_u32 s16, s16, {HF}',
                [f's_add_u32 s{rA}, s{sWS}, s16', f's_addc_u32 s{rA+1}, s{sWS+1}, 0'],
                f's_mov_b32 s{rA+2}, 221184', f's_mov_b32 s{rA+3}, 0x20000',
                [f's_add_u32 s{rH}, s{sWS}, {XS}', f's_addc_u32 s{rH+1}, s{sWS+1}, 0'],
                f's_mov_b32 s{rH+2}, 0x300000', f's_mov_b32 s{rH+3}, 0x20000',
                f's_mul_i32 s{sRUN}, s{sW}, {5*4096}']
        free += [f's_lshl_b32 s18, s{sHG}, 2', f's_add_u32 s18, s18, s{sW}', f's_mul_i32 s{sT+8}, s18, 6912']
        extra[118] += self.touch_h(rA, sT + 8)
        vW, vRd, vID = vT0, vT1, K8P[0]
        self.stamp(1)
        I(M1(0))
        I(M2(0))
        for n in range(NW):
            s = S_[n % 3]
            E = [f'v_exp_f32 v{s+r}, v{s+r}' for r in range(16)]
            seq = []
            if n + 1 < NW:
                seq.append(M1(n + 1))
            if n >= 8 and free:
                f = free.pop(0)
                if isinstance(f, list):
                    extra[n] = f + extra[n]
                else:
                    seq.append(f)
            seq += E[0:4]
            if n + 1 < NW:
                seq.append(M2(n + 1))
            seq += E[4:8]
            if n > 0:
                seq.append(P2(n - 1))
            seq += extra[n]
            if n == 121:
                seq.append(f'buffer_load_dword v{vID}, v{vL4}, {SRD(rFL)}, s{sFLO} offen offset:512 sc1')
            if n == 127:
                seq += [f'ds_write_b128 v{vW}, {R(O_[1] + 4*j, 4)} offset:{1024*(3+j)}' for j in range(3)]
            seq += E[8:12]
            seq.append(P1(n))
            if n % 4 == 2 and n + 2 < NW:
                seq.append(NEED(K16[((n + 2) // 4) % 3]))
            if n == 125:
                seq += [f'v_add_u32 v{vW}, s{sXW}, v{vL16}', f'v_add_u32 v{vRd}, s{sXR}, v{vL16}']
            if n == 126:
                seq += [f'ds_write_b128 v{vW}, {R(O_[0] + 4*j, 4)} offset:{1024*j}' for j in range(3)]
            seq += E[12:16]
            P.run(seq)
        assert not free
        P.wait(lg=0)
        I('s_barrier')
        RX = O_[0]
        for j in range(6):
            I(f'ds_read_b128 {R(RX + 4*j, 4)}, v{vRd} offset:{1024*j}')
        I(P2(NW - 1))
        self.stamp(2)
        vO, vO2, vHF = S_[0], S_[0] + 1, S_[0] + 2
        I(f'v_lshrrev_b32 v{vHF}, 5, v{vLANE}')
        I(f'v_and_b32 v{vO}, 15, v{vLANE}')
        I(f'v_lshlrev_b32 v{vO}, 4, v{vO}')
        I(f'v_bfe_u32 v{vT0}, v{vLANE}, 4, 1')
        I(f'v_lshl_add_u32 v{vO2}, v{vT0}, 10, v{vO}')
        I(f'v_lshl_add_u32 v{vO}, v{vHF}, 8, v{vO2}')
        I(f'v_lshl_add_u32 v{vO2}, v{vHF}, 30, v{vO2}')
        I(f'v_cmp_eq_u32 vcc, s{sFAST}, v{vID}')
        I(f's_mov_b32 s16, 0x21800000')
        I(f's_mov_b32 s17, 0x5f800000')
        I(f's_cmp_eq_u32 vcc_lo, -1')
        I(f's_cselect_b32 s72, 1, 0')
        if self.dbg.get('forceslow'):
            I(f's_mov_b32 s72, 0')
        OWN = [O_[2], O_[3]]
        vl = [S_[0] + 4, S_[0] + 6]
        PK = S_[0] + 8
        for t in range(2):
            o = OWN[t]
            for j in (4, 5, 0, 1, 2, 3):
                I(f'v_pk_add_f32 {R(o + 2*j, 2)}, {R(o + 2*j, 2)}, {R(RX + 12*t + 2*j, 2)}')
            I(f'v_mov_b32 v{vl[t]}, v{o + 8}')
            I(f'v_mov_b32 v{vl[t]+1}, v{o + 8}')
            I(f'v_permlane32_swap_b32 v{vl[t]}, v{vl[t]+1}')
            I(f'v_rcp_f32 v{vl[t]}, v{vl[t]+1}')
        I(f'v_cmp_le_f32 vcc, s16, v{vl[0]+1}')
        I(f'v_cmp_ge_f32 s[18:19], s17, v{vl[0]+1}')
        I(f's_and_b64 s[{sT+4}:{sT+5}], vcc, s[18:19]')
        I(f'v_cmp_le_f32 vcc, s16, v{vl[1]+1}')
        I(f'v_cmp_ge_f32 s[18:19], s17, v{vl[1]+1}')
        I(f's_and_b64 s[{sT+4}:{sT+5}], s[{sT+4}:{sT+5}], vcc')
        I(f's_and_b64 s[{sT+4}:{sT+5}], s[{sT+4}:{sT+5}], s[18:19]')
        I(f's_cmp_eq_u64 s[{sT+4}:{sT+5}], -1')
        I(f's_cselect_b32 s16, 0, 1')
        if self.dbg.get('forcefb'):
            I('s_mov_b32 s16, 1')
        I(f's_lshl_b32 s17, s{sW}, 2')
        I(f's_add_u32 s17, s17, {L_CK}')
        I(f'v_mov_b32 v{vT0}, s16')
        I(f'v_mov_b32 v{vT1}, s17')
        I(f'ds_write_b32 v{vT1}, v{vT0}')
        for t in range(2):
            o = OWN[t]
            I(f'v_mov_b32 v{vl[t]+1}, v{vl[t]}')
            for j in range(6):
                I(f'v_pk_mul_f32 {R(o + 2*j, 2)}, {R(o + 2*j, 2)}, {R(vl[t], 2)}')
            for d in range(6):
                I(f'v_cvt_pk_bf16_f32 v{PK+8*t+d}, v{o+2*d}, v{o+2*d+1}')
            I(f'buffer_store_dwordx4 {R(PK+8*t,4)}, v{vO}, {SRD(rA)}, s{sO1} offen offset:{2048*t}', tag='pub')
            I(f'buffer_store_dwordx2 {R(PK+8*t+4,2)}, v{vO2}, {SRD(rA)}, s{sO2} offen offset:{2048*t}', tag='pub')
        P.wait(lg=0)
        I('s_barrier')
        I(f'v_mov_b32 v{vT1}, {L_CK}')
        I(f'ds_read_b128 {R(RX,4)}, v{vT1}')
        self.slot_offsets(184)
        I(f'v_or3_b32 v{RX}, v{RX}, v{RX+1}, v{RX+2}')
        I(f'v_or_b32 v{RX}, v{RX}, v{RX+3}')
        I(f'v_readfirstlane_b32 s16, v{RX}')
        I(f's_andn2_b32 s16, s16, s{sFB}')
        I(f's_cbranch_scc1 Lfallback')
        I(f's_mov_b32 s{sFAST}, s72')

    def touch_h(self, r, soff):
        return [f'v_lshlrev_b32 v{vT0}, 7, v{vLANE}', f'v_min_u32 v{vT0}, 6784, v{vT0}',
                f'buffer_load_dword v{vT1}, v{vT0}, {SRD(r)}, s{soff} offen']

    def fallback(self):
        P = self.P
        I = P.I
        P.label('Lfallback')
        P.drain()
        MX = O_[0]
        I(f's_mov_b32 s{sFB}, 1')
        for q in range(4):
            I(f'v_mov_b32 v{MX+q}, 0xff800000')
        I(f's_and_b32 s13, s{sW}, 1')
        I(f's_mul_i32 s{sKV}, s13, {16*7168}')
        I(f's_mov_b32 s13, 16')
        P.label('Lfb_loop')
        I(f'buffer_load_dwordx4 {R(K16[0],4)}, v{vL16}, {SRD(rB)}, s{sKV} offen')
        I(f'buffer_load_dwordx4 {R(K16[1],4)}, v{vL16}, {SRD(rB)}, s{sKV} offen offset:1024')
        I(f'buffer_load_dwordx4 {R(K8P[0],4)}, v{vL16}, {SRD(rB)}, s{sKV} offen offset:2048')
        P.wait(vm=0)
        for e in range(2):
            for q in range(4):
                s = S_[q % 2]
                I(MF32(s, K16[e], Q16[q]))
                I(MF8(s, K8P[0] + 2 * e, Q8[q]))
                for r in range(0, 16, 2):
                    I(f'v_max3_f32 v{MX+q}, v{MX+q}, v{s+r}, v{s+r+1}')
        I(f's_add_u32 s{sKV}, s{sKV}, 7168')
        I('s_sub_u32 s13, s13, 1')
        I('s_cmp_lg_u32 s13, 0')
        I('s_cbranch_scc1 Lfb_loop')
        for q in range(4):
            I(f'v_mov_b32 v{MX+4+q}, v{MX+q}')
        for q in range(4):
            I(f'v_permlane32_swap_b32 v{MX+q}, v{MX+4+q}')
        for q in range(4):
            I(f'v_max_f32 v{MX+q}, v{MX+q}, v{MX+4+q}')
        I(f's_lshl_b32 s13, s{sW}, 10')
        I(f's_add_u32 s13, s13, {L_MX}')
        I(f's_xor_b32 s14, s13, 1024')
        I(f'v_add_u32 v{MX+8}, s13, v{vL16}')
        I(f'v_add_u32 v{MX+9}, s14, v{vL16}')
        I(f'ds_write_b128 v{MX+8}, {R(MX,4)}')
        P.wait(lg=0)
        I('s_barrier')
        I(f'ds_read_b128 {R(MX+4,4)}, v{MX+9}')
        I(f'v_cmp_le_u32 vcc, 32, v{vLANE}')
        for q in range(4):
            a, b, c = MX + 12, MX + 13, MX + 14
            I(f'v_max_f32 v{a}, v{MX+q}, v{MX+4+(q^2)}')
            I(f'v_sub_f32 v{a}, 0, v{a}')
            I(f'v_cvt_pk_bf16_f32 v{b}, v{a}, v{a}')
            I(f'v_and_b32 v{b}, 0xffff0000, v{b}')
            I(f'v_sub_f32 v{a}, v{a}, v{b}')
            I(f'v_cvt_pk_bf16_f32 v{c}, v{b}, v{a}')
            I(f'v_and_b32 v{b}, 0xffff0000, v{c}')
            I(f'v_sub_f32 v{a}, v{a}, v{b}')
            I(f'v_cvt_pk_bf16_f32 v{b}, v{a}, 0')
            I(f'v_cndmask_b32 v{Q8[q]}, v{Q8[q]}, v{c}, vcc')
            I(f'v_cndmask_b32 v{Q8[q]+1}, v{Q8[q]+1}, v{b}, vcc')
        I(f's_and_b32 s13, s{sW}, 1')
        I(f's_mul_i32 s{sKV}, s13, {16*7168}')
        for t in self.kv_loads(0) + self.kv_loads(1):
            I(t)
        P.drain()
        I('s_barrier')
        I('s_branch Lattn_main')
        P.forget()

    def slot_offsets(self, vS):
        P = self.P
        for j in range(4):
            P.I(f's_add_u32 s13, s{sW}, {j}')
            P.I(f's_and_b32 s13, s13, 3')
            P.I(f's_lshl_b32 s13, s13, 10')
            P.I(f'v_add_u32 v{vS+j}, s13, v{vL16}')

    def xs_srd(self, r, sbase, off):
        srd_off(self.P, r, sbase, off, 0x300000)

    def xs_setup(self, vTail, vSt):
        I = self.P.I
        I(f's_mul_i32 s{sXO}, s{sBLK}, 2560')
        I(f's_lshl_b32 s{sXO+1}, s{sBLK}, 7')
        I(f's_add_u32 s{sXO+1}, s{sXO+1}, {STT}')
        I(f'v_and_b32 v{vSt}, 15, v{vLANE}')
        I(f'v_lshrrev_b32 v{vT0}, 5, v{vLANE}')
        I(f'v_lshlrev_b32 v{vTail}, 8, v{vT0}')
        I(f'v_lshl_add_u32 v{vTail}, v{vSt}, 4, v{vTail}')
        I(f'v_bfe_u32 v{vT0}, v{vLANE}, 4, 1')
        I(f'v_lshl_add_u32 v{vTail}, v{vT0}, 3, v{vTail}')
        I(f'v_lshrrev_b32 v{vT0}, 4, v{vLANE}')
        I(f'v_lshlrev_b32 v{vSt}, 3, v{vSt}')
        I(f'v_lshl_add_u32 v{vSt}, v{vT0}, 30, v{vSt}')

    def red_setup(self, vW):
        I = self.P.I
        for j in range(4):
            I(f's_add_u32 s13, s{sW}, {j}')
            I(f's_and_b32 s13, s13, 3')
            I(f's_mul_i32 s13, s13, 15360')
            I(f's_add_u32 s13, s13, {L_RED + max(j-1, 0)*5120}')
            I(f'v_add_u32 v{vW+j}, s13, v{vL16}')

    def last_kstep(self, ACC, mf, vW, RES):
        P = self.P
        order = [(ct, j) for j in (1, 2, 3, 0) for ct in range(5)]
        pend = []
        for n, (ct, j) in enumerate(order):
            P.I(mf(ct, j))
            if j:
                pend.append((n, f'ds_write_b128 v{vW+j}, {R(ACC[ct][j],4)} offset:{1024*ct}'))
            if pend and n - pend[0][0] >= 5:
                P.I(pend.pop(0)[1])
        for _, t in pend:
            P.I(t)

    def reduce_tail(self, ACC, TMP, RES, vW, keep, _, scaled):
        P = self.P
        I = P.I
        P.wait(lg=0)
        I('s_barrier')
        for ct in range(5):
            for j in range(3):
                I(f'ds_read_b128 {R(TMP + 12*ct + 4*j, 4)}, v{vW} offset:{5120*j + 1024*ct}')
        for ct in range(5):
            for d in range(2):
                t = ACC[ct][2] + 2 * d
                I(f'v_lshlrev_b32 v{t}, 16, v{RES+2*ct+d}')
                I(f'v_and_b32 v{t+1}, 0xffff0000, v{RES+2*ct+d}')
        for ct in range(5):
            a = ACC[ct][0]
            t = TMP + 12 * ct
            for r in (0, 2):
                I(f'v_pk_add_f32 {R(t+r,2)}, {R(t+r,2)}, {R(t+4+r,2)}')
            for r in (0, 2):
                I(f'v_pk_add_f32 {R(a+r,2)}, {R(a+r,2)}, {R(t+8+r,2)}')
            for r in (0, 2):
                I(f'v_pk_add_f32 {R(a+r,2)}, {R(a+r,2)}, {R(t+r,2)}')
            for r in (0, 2):
                if scaled:
                    I(f'v_pk_fma_f32 {R(a+r,2)}, {R(a+r,2)}, s[{sLN2}:{sLN2+1}], {R(ACC[ct][2]+r,2)}')
                else:
                    I(f'v_pk_add_f32 {R(a+r,2)}, {R(a+r,2)}, {R(ACC[ct][2]+r,2)}')
            for d in range(2):
                I(f'v_cvt_pk_bf16_f32 v{keep+2*ct+d}, v{a+2*d}, v{a+2*d+1}')

    def publish_x(self, ACC, keep, rX, vTail, vSt, T):
        P = self.P
        I = P.I
        I(f'buffer_store_dwordx4 {R(keep,4)}, v{vL16}, {SRD(rX)}, s{sXO} offen', tag='pub')
        I(f'buffer_store_dwordx4 {R(keep+4,4)}, v{vL16}, {SRD(rX)}, s{sXO} offen offset:1024', tag='pub')
        I(f'buffer_store_dwordx2 {R(keep+8,2)}, v{vTail}, {SRD(rX)}, s{sXO} offen offset:2048', tag='pub')
        a0 = ACC[0][0]
        I(f'v_pk_add_f32 {R(T,2)}, {R(a0,2)}, {R(a0+2,2)}')
        I(f'v_pk_mul_f32 {R(T+2,2)}, {R(a0,2)}, {R(a0,2)}')
        I(f'v_pk_fma_f32 {R(T+2,2)}, {R(a0+2,2)}, {R(a0+2,2)}, {R(T+2,2)}')
        for ct in range(1, 5):
            a = ACC[ct][0]
            for r in (0, 2):
                I(f'v_pk_add_f32 {R(T,2)}, {R(T,2)}, {R(a+r,2)}')
                I(f'v_pk_fma_f32 {R(T+2,2)}, {R(a+r,2)}, {R(a+r,2)}, {R(T+2,2)}')
        I(f'v_add_f32 v{T}, v{T}, v{T+1}')
        I(f'v_add_f32 v{T+1}, v{T+2}, v{T+3}')
        for sw in ('16', '32'):
            I(f'v_mov_b32 v{T+2}, v{T}')
            I(f'v_mov_b32 v{T+3}, v{T+1}')
            I(f'v_permlane{sw}_swap_b32 v{T}, v{T+2}')
            I(f'v_permlane{sw}_swap_b32 v{T+1}, v{T+3}')
            I(f'v_pk_add_f32 {R(T,2)}, {R(T,2)}, {R(T+2,2)}')
        I(f'buffer_store_dwordx2 {R(T,2)}, v{vSt}, {SRD(rX)}, s{sXO+1} offen', tag='pub')

    def wo_stage(self):
        P = self.P
        I = P.I
        ACC = [[8 + 16 * ct + 4 * j for j in range(4)] for ct in range(5)]
        B = [[88 + 16 * k + 4 * j for j in range(4)] for k in range(5)]
        A = [168 + 4 * j for j in range(4)]
        vS = 184
        vA = vT1
        I(f's_mul_i32 s13, s{sW}, 25600')
        I(f'v_add_u32 v{vA}, s13, v{vL16}')
        rd = lambda f: f'ds_read_b128 {R(A[f % 4],4)}, v{vA} offset:{1024*f}'
        P.wait_tag('wo')
        for f in range(3):
            I(rd(f))
        self.signal(0)
        if self.dbg.get('stamps'):
            I(f'v_mov_b32 v16, v{vA}')
            self.stamp(3)
            I(f'v_mov_b32 v{vA}, v16')
        self.poll(0, sMASK8)

        def bload(k):
            L = [f'buffer_load_dwordx4 {R(B[k][j],4)}, v{vS+j}, {SRD(rA)}, s{sRUN} offen sc1' for j in range(4)]
            if k < 4:
                L.append(f's_add_u32 s{sRUN}, s{sRUN}, 4096')
            return L
        P.run(bload(0) + bload(1))
        side = bload(2) + bload(3) + bload(4)
        if self.dbg.get('stamps'):
            I(f'v_mov_b32 v16, v{vA}')
            self.stamp(4)
            I(f'v_mov_b32 v{vA}, v16')
        RES, vTail, vSt = 88, 98, 99
        vW = vS
        A4 = [104, 108, 112, 116, 100]
        for k in range(4):
            for ct in range(5):
                f = 5 * k + ct
                for j in range(4):
                    I(MF16(ACC[ct][j], A[f % 4], B[k][j], k == 0))
                    if j == 0 and f + 3 < 20:
                        I(rd(f + 3))
                    if j == 1:
                        P.need(A[(f + 1) % 4], 4)
                    if j == 2 and ct == 4:
                        P.need(B[k + 1][3], 4)
                    if k == 2 and j == 2:
                        I(f'ds_read_b128 {R(A4[ct],4)}, v{vA} offset:{1024*(20+ct)}')
                    if k == 0 and side and (j >= 2 or ct == 4):
                        I(side.pop(0))
                        if side and side[0].startswith('s_'):
                            I(side.pop(0))
            if k == 0:
                assert not side, side
                self.xs_setup(vTail, vSt)
                I(f'buffer_load_dword v{RES}, v{vSt}, {SRD(rH)}, s{sXO+1} offen')
                P.I(f'buffer_load_dwordx4 {R(RES,4)}, v{vL16}, {SRD(rH)}, s{sXO} offen', nowaw=True)
                I(f'buffer_load_dwordx4 {R(RES+4,4)}, v{vL16}, {SRD(rH)}, s{sXO} offen offset:1024')
                I(f'buffer_load_dwordx2 {R(RES+8,2)}, v{vTail}, {SRD(rH)}, s{sXO} offen offset:2048')
                self.red_setup(vW)
        self.last_kstep(ACC, lambda ct, j: MF16(ACC[ct][j], A4[ct], B[4][j], False), vW, RES)
        self.stamp(5)
        self.reduce_tail(ACC, 104, RES, vW, 172, 88 - 0, False)
        self.publish_x(ACC, 172, rH, vTail, vSt, 104)
        self.X1K = 172

    def ximage_setup(self, vXB, vSB):
        I = self.P.I
        I(f'v_and_b32 v{vSB}, 15, v{vLANE}')
        I(f'v_bfe_u32 v{vT0}, v{vLANE}, 4, 1')
        I(f'v_mul_u32_u24 v{vXB}, 20480, v{vT0}')
        I(f'v_lshl_add_u32 v{vXB}, v{vSB}, 4, v{vXB}')
        I(f'v_lshrrev_b32 v{vT0}, 5, v{vLANE}')
        I(f'v_lshl_add_u32 v{vXB}, v{vT0}, 8, v{vXB}')
        I(f'v_lshrrev_b32 v{vT0}, 4, v{vLANE}')
        I(f'v_lshlrev_b32 v{vSB}, 3, v{vSB}')
        I(f'v_lshl_add_u32 v{vSB}, v{vT0}, 8, v{vSB}')

    def ximage_srd(self, r):
        I = self.P.I
        I(f's_mul_i32 s13, s{sRB}, 81920')
        I(f's_add_u32 s13, s13, {XS}')
        srd_off(self.P, r, sWS, 's13', 81920)
        I(f's_lshr_b32 s13, s{sBLK}, 3')
        I(f's_lshl_b32 s13, s13, 10')
        I(f's_add_u32 s13, s13, {XS + STT}')
        srd_off(self.P, r + 4, sWS, 's13', 1024)
        I(f's_mul_i32 m0, s{sW}, 20480')

    def ximage_load(self, rX, vSB, SB):
        P = self.P
        I = P.I
        I(f'buffer_load_dwordx2 {R(SB,2)}, v{vSB}, {SRD(rX+4)}, 0 offen sc1')
        I(f'buffer_load_dwordx2 {R(SB+2,2)}, v{vSB}, {SRD(rX+4)}, 0 offen offset:128 sc1')
        L = []
        for i in range(20):
            g = []
            if i and i % 4 == 0:
                g.append('s_add_u32 m0, m0, 4096')
            g.append((f'buffer_load_dwordx4 v{vL16}, {SRD(rX)}, m0 offen offset:{1024*(i%4)} sc1 lds', f'x{i//5}'))
            L.append(g)
        P.run(flat(L[:10]))
        return L[10:]

    def xfrag(self, dst, vXB, ks, tt):
        return f'ds_read_b128 {R(dst,4)}, v{vXB} offset:{tt*40960 + ks*512}'

    def stats_final(self, s1, s2, T):
        a, b = T, T + 1
        L = []
        for s in (s1, s2):
            L += [f'v_mov_b32 v{a}, v{s}', f'v_permlane16_swap_b32 v{s}, v{a}', f'v_add_f32 v{s}, v{s}, v{a}',
                  f'v_mov_b32 v{a}, v{s}', f'v_permlane32_swap_b32 v{s}, v{a}', f'v_add_f32 v{s}, v{s}, v{a}']
        G = T + 4
        inv = '0x3acccccd'
        L += [f'v_mul_f32 v{s1}, {inv}, v{s1}',
              f'v_mul_f32 v{s2}, {inv}, v{s2}',
              f'v_fma_f32 v{s2}, -v{s1}, v{s1}, v{s2}',
              f'v_max_f32 v{s2}, 0, v{s2}',
              f'v_add_f32 v{s2}, 0x3727c5ac, v{s2}',
              f'v_rsq_f32 v{a}, v{s2}',
              f'v_sub_f32 v{s1}, 0, v{s1}',
              f'v_mul_f32 v{s2}, v{s2}, v{a}',
              f'v_cvt_pk_bf16_f32 v{G+1}, v{s1}, v{s2}',
              f'v_lshlrev_b32 v{b}, 16, v{G+1}',
              f'v_sub_f32 v{s1}, v{s1}, v{b}',
              f'v_cvt_pk_bf16_f32 v{G}, v{b}, v{s1}',
              f'v_and_b32 v{b}, 0xffff0000, v{G+1}',
              f'v_sub_f32 v{s2}, v{s2}, v{b}',
              f'v_cvt_pk_bf16_f32 v{G+2}, v{s2}, 0',
              f'v_mov_b32 v{G+3}, 0',
              f's_lshl_b32 s13, s{sW}, 4',
              f'v_and_b32 v{b}, 15, v{vLANE}',
              f'v_add_u32 v{b}, s13, v{b}',
              f'v_lshlrev_b32 v{s1}, 4, v{b}',
              f'v_lshlrev_b32 v{b}, 2, v{b}',
              f'v_add_u32 v{s1}, {L_EX}, v{s1}',
              f'v_add_u32 v{b}, {L_RS}, v{b}',
              f'ds_write_b128 v{s1}, {R(G,4)}',
              f'ds_write_b32 v{b}, v{a}']
        return L

    def stats_fetch(self, BX, RS, T):
        L = [f'v_and_b32 v{T}, 31, v{vLANE}', f'v_lshlrev_b32 v{T+1}, 2, v{T}', f'v_lshlrev_b32 v{T}, 4, v{T}',
             f'v_add_u32 v{T}, {L_EX}, v{T}', f'v_add_u32 v{T+1}, {L_RS}, v{T+1}']
        for tt in range(2):
            L.append(f'ds_read_b128 {R(BX[tt],4)}, v{T} offset:{512*tt}')
            L.append(f'ds_read_b32 v{RS[tt]}, v{T+1} offset:{128*tt}')
        return L

    def dual_pass(self, ACC, W, BB, vXB, SB, T, BX, RS, early, paced=None):
        P = self.P
        nb = len(BB)
        units = [(ks, tt) for ks in range(40) for tt in range(2)]
        AH = nb - 1
        pend_k = 0
        P.I(f'v_add_f32 v{SB}, v{SB}, v{SB+2}')
        P.I(f'v_add_f32 v{SB+1}, v{SB+1}, v{SB+3}')
        P.run(self.stats_final(SB, SB + 1, T))

        def arrive(c):
            P.wait_tag(f'x{c}')
            P.I('s_barrier')
        P.wait(lg=0)
        arrive(0)
        for u in range(AH):
            P.I(self.xfrag(BB[u % nb], vXB, *units[u]))
        P.run(self.stats_fetch(BX, RS, T))
        for u, (ks, tt) in enumerate(units):
            P.I(MF32(ACC[tt], W[ks], BB[u % nb], None if ks == 0 else ACC[tt]))
            un = u + AH
            if un < len(units):
                if un % 20 == 0:
                    arrive(un // 20)
                P.I(self.xfrag(BB[un % nb], vXB, *units[un]))
            if early:
                P.run(flat([early.pop(0)]))
            elif paced and u >= 24 and u % 3 == 0:
                P.I(paced.pop(0))
            if u + 1 < len(units):
                P.need(BB[(u + 1) % nb], 4)
                P.need(W[units[u + 1][0]], 4)
        for tt in range(2):
            P.I(MF32(ACC[tt], W[40], BX[tt], ACC[tt]))

    def mish_tile(self, acc, tt, C, T, rOut):
        PKB = T + 8
        L = []
        for g in range(4):
            a = acc + 4 * g
            t = T + 4 * (g % 2)
            u = T + 16
            L += [f'v_mul_f32 v{a+i}, v{a+i}, v{C[tt]}' for i in range(4)]
            L += [f'v_exp_f32 v{t+i}, v{a+i}' for i in range(4)]
            L += [f'v_fma_f32 v{u+i}, v{t+i}, 0.5, 1.0' for i in range(4)]
            L += [f'v_fma_f32 v{t+i}, v{t+i}, v{u+i}, 1.0' for i in range(4)]
            L += [f'v_rcp_f32 v{t+i}, v{t+i}' for i in range(4)]
            L += [f'v_fma_f32 v{a+i}, -v{a+i}, v{t+i}, v{a+i}' for i in range(4)]
            p = PKB + 4 * (g // 2) + 2 * (g % 2)
            L += [f'v_cvt_pk_bf16_f32 v{p}, v{a}, v{a+1}', f'v_cvt_pk_bf16_f32 v{p+1}, v{a+2}, v{a+3}']
            if g % 2 == 1:
                L.append((f'buffer_store_dwordx4 {R(PKB + 4*(g//2),4)}, v{self.vH}, {SRD(rOut)}, 0 offen offset:{tt*2048 + (g//2)*512}', 'pub'))
        return L

    def ffn1_stage(self):
        P = self.P
        I = P.I
        ACC = [8, 24, 40, 56]
        BB = [72 + 4 * j for j in range(6)]
        RESK = 96
        vXB, vSB, SB = 106, 107, 116
        C = [126, 127]
        BX = [132, 136]
        T = 140
        self.vH = 164
        for r in range(10):
            I(f'v_mov_b32 v{RESK+r}, v{self.X1K+r}')
        self.RESK = RESK
        self.ximage_setup(vXB, vSB)
        self.ximage_srd(rA)
        I(f's_mul_i32 s13, s{sRB}, 221184')
        I(f's_lshl_b32 s14, s{sT+2}, 12')
        I(f's_add_u32 s13, s13, s14')
        I(f's_add_u32 s13, s13, {HF}')
        I(f's_min_u32 s14, s{sT}, 4096')
        srd_off(P, rG, sWS, 's13', 's14')
        I(f's_add_u32 s13, s13, 4096')
        I(f's_min_u32 s14, s{sT+1}, 4096')
        srd_off(P, rH, sWS, 's13', 's14')
        I(f's_mul_i32 s13, s{sHG}, 276480')
        I(f's_mul_i32 s14, s{sW}, 71680')
        I(f's_add_u32 s13, s13, s14')
        I(f's_add_u32 s13, s13, {W2F}')
        I(f's_sub_u32 s14, 276480, s14')
        srd_off(P, rE, sWS, 's13', 's14')
        I(f'v_bfe_u32 v{vT0}, v{vLANE}, 4, 1')
        I(f'v_and_b32 v{self.vH}, 15, v{vLANE}')
        I(f'v_lshlrev_b32 v{self.vH}, 4, v{self.vH}')
        I(f'v_lshl_add_u32 v{self.vH}, v{vT0}, 10, v{self.vH}')
        I(f'v_lshrrev_b32 v{vT0}, 5, v{vLANE}')
        I(f'v_lshl_add_u32 v{self.vH}, v{vT0}, 8, v{self.vH}')
        self.signal(1)
        self.stamp(6)
        self.poll(1, sMASK1)
        early = self.ximage_load(rA, vSB, SB)
        self.stamp(7)
        w2 = [fragload(W1B[40], rD, 40)] + [fragload(W2R[f], rE, f) for f in range(70)]
        self.dual_pass(ACC[0:2], W1A, BB, vXB, SB, T, BX, C, early, w2)
        self.stamp(8)
        for tt in range(2):
            I(f'v_mul_f32 v{C[tt]}, 0x3fb8aa3b, v{C[tt]}')
        nb = len(BB)
        units = [(ks, tt) for tt in range(2) for ks in range(40)]
        main = []
        AH = nb - 1
        pre = [self.xfrag(BB[u % nb], vXB, *units[u]) for u in range(AH)]
        for u, (ks, tt) in enumerate(units):
            g = [MF32(ACC[2 + tt], W1B[ks], BB[u % nb], None if ks == 0 else ACC[2 + tt])]
            if u + AH < len(units):
                g.append(self.xfrag(BB[(u + AH) % nb], vXB, *units[u + AH]))
            if u % 2 == 0:
                f = 70 - len(w2)
                assert f < 45 or (tt == 1 and f - 45 <= ks)
                g.append(w2.pop(0))
            if u + 1 < len(units):
                g.append(NEED(BB[(u + 1) % nb]))
            main.append(g)
            if ks == 39:
                main.append([MF32(ACC[2 + tt], W1B[40], BX[tt], ACC[2 + tt])])
        e0 = self.mish_tile(ACC[0], 0, C, T, rG)
        e1 = self.mish_tile(ACC[1], 1, C, T, rG)
        e2 = self.mish_tile(ACC[2], 0, C, T, rH)
        e3 = self.mish_tile(ACC[3], 1, C, T, rH)
        n1 = 55
        seq = weave_cost(main[:n1], e0 + e1) + weave_cost(main[n1:], e2)
        P.run(pre)
        P.run(flat(seq))
        self.stamp(9)
        P.run(e3[:27] + [w2.pop(0)] + e3[27:54] + [w2.pop(0)] + e3[54:80] + [w2.pop(0)] + e3[80:])
        self.w2_left = w2

    def ffn2_stage(self):
        P = self.P
        I = P.I
        ACC = [[8 + 16 * ct + 4 * j for j in range(4)] for ct in range(5)]
        vS, vW, vTail, vSt = 88, 92, 106, 107
        HB = HBUF[:31] + [HBUF[31]]
        ND = 4
        HB = HBUF[:4 * ND]
        self.slot_offsets(vS)
        self.red_setup(vW)
        self.xs_setup(vTail, vSt)
        I(f's_mul_i32 s13, s{sRB}, 221184')
        I(f's_add_u32 s13, s13, {HF}')
        srd_off(P, rA, sWS, 's13', 221184)
        I(f's_mul_i32 s{sRUN}, s{sW}, {14*4096}')
        self.xs_srd(rB, sWS, XS)
        self.wq_srd()
        I(f's_cmp_eq_u32 s{sMODE}, 2')
        I(f's_cselect_b32 s{rF+2}, 0, s{rF+2}')
        self.signal(2)
        self.stamp(10)
        self.poll(2, sMASK8)

        def hload(k):
            L = [f'buffer_load_dwordx4 {R(HB[4*(k%ND)+j],4)}, v{vS+j}, {SRD(rA)}, s{sRUN} offen sc1' for j in range(4)]
            if k < 13:
                L.append(f's_add_u32 s{sRUN}, s{sRUN}, 4096')
            return L
        for k in range(2):
            P.run(hload(k))
        self.stamp(11)
        wq = 0
        P.run(hload(2))
        w2 = self.w2_left
        for k in range(13):
            side = hload(k + 3) if k + 3 < 14 else []
            other = None
            if w2 and k >= 1:
                assert (70 - len(w2)) // 5 > k + 1
                other = w2.pop(0)
            if not side:
                side = [fragload(WQR[wq + i], rF, wq + i) for i in range(4)]
                wq += 4
            n = 0
            for ct in range(5):
                for j in range(4):
                    I(MF16(ACC[ct][j], W2R[5 * k + ct], HB[4 * (k % ND) + j], k == 0))
                    if n % 5 == 1:
                        I(side.pop(0))
                        if side and side[0].startswith('s_'):
                            I(side.pop(0))
                    if n == 8 and other:
                        I(other)
                    if n == 18:
                        P.need(HB[4 * ((k + 1) % ND) + 3], 4)
                    n += 1
            assert not side
        assert not w2
        self.last_kstep(ACC, lambda ct, j: MF16(ACC[ct][j], W2R[65 + ct], HB[4 * (13 % ND) + j], False), vW, self.RESK)
        self.stamp(12)
        self.reduce_tail(ACC, 108, self.RESK, vW, 12, None, True)
        I(f's_cmp_eq_u32 s{sMODE}, 2')
        I('s_cbranch_scc1 Lout')
        self.publish_x(ACC, 12, rB, vTail, vSt, 108)
        while wq < self.WQ_EARLY:
            I(fragload(WQR[wq], rF, wq))
            wq += 1

    def out_stage(self):
        P = self.P
        I = P.I
        P.label('Lout')
        I(f's_mul_i32 s13, s{sRB}, 81920')
        I(f's_mul_i32 s14, s{sHG}, 160')
        I(f's_add_u32 s13, s13, s14')
        I(f's_mul_i32 s14, s{sW}, 20480')
        I(f's_add_u32 s13, s13, s14')
        srd(P, rG, sOUT, sOUT + 1, 2048 * 1280)
        I(f'v_and_b32 v{vT1}, 15, v{vLANE}')
        I(f'v_mul_u32_u24 v{vT1}, 1280, v{vT1}')
        I(f'v_lshrrev_b32 v{vT0}, 4, v{vLANE}')
        I(f'v_lshl_add_u32 v{vT0}, v{vT0}, 3, v{vT1}')
        for ct in range(5):
            I(f'buffer_store_dwordx2 {R(12+2*ct,2)}, v{vT0}, {SRD(rG)}, s13 offen offset:{32*ct}')
        I('s_branch Lfin')
        P.forget()

    def qkv_stage(self):
        P = self.P
        I = P.I
        ACC = [8, 24]
        BB = [72 + 4 * j for j in range(6)]
        vXB, vSB, SB = 106, 107, 116
        RS = [126, 127]
        BX = [132, 136]
        T = 140
        self.signal(3)
        self.stamp(13)
        self.poll(3, sMASK1)
        P.label('Lqkv')
        P.vm = [parse(fragload(WQR[k], rF, k)) for k in range(self.WQ_EARLY)]
        self.ximage_setup(vXB, vSB)
        self.ximage_srd(rG)
        early = self.ximage_load(rG, vSB, SB)
        rest = [fragload(WQR[k], rF, k) for k in range(self.WQ_EARLY, 41)]
        early += [g for t in rest for g in ([t], [])]
        self.stamp(14)
        I(f's_lshl_b32 s13, s{sRB}, 3')
        I(f's_add_u32 s13, s13, s{sHG}')
        I(f's_mul_i32 s13, s13, 12288')
        I(f's_mul_i32 s14, s{sW}, 3072')
        I(f's_add_u32 s13, s13, s14')
        I(f's_add_u32 s13, s13, {QF}')
        srd_off(P, rB, sLBN, 's13', 3072)
        I(f's_mul_i32 s13, s{sRB}, 7168')
        I(f's_add_u32 s13, s13, {KVF}')
        I(f's_cmp_eq_u32 s{sHG}, 0')
        I(f's_cselect_b32 s14, 7168, 0')
        I(f's_cmp_lt_u32 s{sW}, 3')
        I(f's_cselect_b32 s14, s14, 0')
        srd_off(P, rC, sLBN, 's13', 's14')
        I(f's_cmp_eq_u32 s{sHG}, 1')
        I(f's_cselect_b32 s14, 7168, 0')
        srd_off(P, rD, sLBN, 's13', 's14')
        self.dual_pass(ACC, WQR, BB, vXB, SB, T, BX, RS, early)
        self.stamp(15)
        I(f's_cmp_lg_u32 s{sMODE}, 0')
        I(f's_cselect_b32 s{rE+2}, 0, s{rE+2}')
        P.run(self.touch_h(rE, sT + 8)[:2])
        I(f'buffer_load_dword v68, v{vT0}, {SRD(rE)}, s{sT+8} offen')
        qs = 20 ** -0.5 * math.log2(math.e)
        import struct
        qsb = struct.unpack('<I', struct.pack('<f', qs))[0]
        vC0, vC1, vVW, vVR, vVS, vL8 = 40, 41, 42, 43, 44, 45
        SC = [46, 47]
        for tt in range(2):
            I(f'v_mul_f32 v{SC[tt]}, {qsb:#x}, v{RS[tt]}')
        I(f's_mov_b32 s15, 0x3f80')
        I(f's_mov_b32 s16, 0x3f803f80')
        I(f's_cmp_eq_u32 s{sHG}, 0')
        I(f's_cselect_b32 s16, s16, s15')
        I(f's_cselect_b32 s15, s15, 0')
        I(f'v_mov_b32 v{vC0}, s16')
        I(f'v_mov_b32 v{vC1}, s15')
        I(f's_cmp_eq_u32 s{sW}, 2')
        I(f's_cselect_b32 vcc_hi, -1, 0')
        I(f's_mov_b32 vcc_lo, 0')
        I(f's_lshl_b32 s15, s{sW}, 3')
        I(f's_add_u32 s16, s15, 1024')
        I(f's_cmp_eq_u32 s{sW}, 2')
        I(f's_cselect_b32 s15, 2048, s15')
        I(f's_cselect_b32 s16, 2056, s16')
        I(f's_lshl_b32 s17, s{sW}, 11')
        I(f's_add_u32 s17, s17, {L_VT}')
        I(f'v_lshrrev_b32 v{vT0}, 5, v{vLANE}')
        I(f'v_mul_u32_u24 v{vT0}, {4*144}, v{vT0}')
        I(f'v_and_b32 v{vT1}, 31, v{vLANE}')
        I(f'v_lshl_add_u32 v{vVW}, v{vT1}, 1, v{vT0}')
        I(f'v_add_u32 v{vVW}, s17, v{vVW}')
        I(f'v_and_b32 v{vT0}, 7, v{vLANE}')
        I(f'v_lshrrev_b32 v{vT1}, 3, v{vLANE}')
        I(f'v_mul_u32_u24 v{vVR}, 144, v{vT0}')
        I(f'v_lshl_add_u32 v{vVR}, v{vT1}, 4, v{vVR}')
        I(f'v_add_u32 v{vVR}, s17, v{vVR}')
        I(f'v_lshlrev_b32 v{vVS}, 9, v{vT1}')
        I(f'v_lshl_add_u32 v{vVS}, v{vT0}, 4, v{vVS}')
        I(f'v_lshlrev_b32 v{vL8}, 3, v{vLANE}')
        I(f's_lshl_b32 s18, s{sW}, 7')
        PK = 48
        for tt in range(2):
            a = ACC[tt]
            p = PK + 8 * tt
            for r in range(12, 16):
                I(f'v_mul_f32 v{a+r}, v{a+r}, v{RS[tt]}')
            for d in range(2):
                I(f'v_cvt_pk_bf16_f32 v{p+6+d}, v{a+12+2*d}, v{a+13+2*d}')
            I(f'v_cndmask_b32 v{p+6}, v{p+6}, v{vC0}, vcc')
            I(f'v_cndmask_b32 v{p+7}, v{p+7}, v{vC1}, vcc')
            I(f'buffer_store_dwordx2 {R(p+6,2)}, v{vL16}, {SRD(rC)}, s{15+tt} offen')
            I(f'ds_write_b16 v{vVW}, v{p+6} offset:{64*tt}')
            I(f'ds_write_b16_d16_hi v{vVW}, v{p+6} offset:{64*tt+144}')
            I(f'ds_write_b16 v{vVW}, v{p+7} offset:{64*tt+288}')
            I(f'ds_write_b16_d16_hi v{vVW}, v{p+7} offset:{64*tt+432}')
        I(f'ds_read_b128 {R(64,4)}, v{vVR}')
        for tt in range(2):
            a = ACC[tt]
            p = PK + 8 * tt
            for r in range(12):
                I(f'v_mul_f32 v{a+r}, v{a+r}, v{SC[tt]}')
            for d in range(6):
                I(f'v_cvt_pk_bf16_f32 v{p+d}, v{a+2*d}, v{a+2*d+1}')
            I(f'buffer_store_dwordx4 {R(p,4)}, v{vL16}, {SRD(rB)}, 0 offen offset:{1536*tt}')
            I(f'buffer_store_dwordx2 {R(p+4,2)}, v{vL8}, {SRD(rB)}, 0 offen offset:{1536*tt+1024}')
        I(f'buffer_store_dwordx4 {R(64,4)}, v{vVS}, {SRD(rD)}, s18 offen offset:3072')
        P.label('Lfin')
        self.stamp(16)
        P.label('Lend')
        I('s_endpgm')
        P.forget()

    def build(self):
        self.prologue()
        self.attention()
        self.wo_stage()
        self.ffn1_stage()
        self.ffn2_stage()
        self.qkv_stage()
        self.out_stage()
        self.fallback()
```

```python
from asmlib import *
from layout import *

OOB = 0x40000000

def srd(P, d, blo, bhi, nrec):
    if d != blo:
        P.I(f's_mov_b32 s{d}, s{blo}')
        P.I(f's_mov_b32 s{d+1}, s{bhi}')
    P.I(f's_mov_b32 s{d+2}, {nrec}')
    P.I(f's_mov_b32 s{d+3}, 0x20000')

def srd_off(P, d, blo, off, nrec):
    P.I(f's_add_u32 s{d}, s{blo}, {off}')
    P.I(f's_addc_u32 s{d+1}, s{blo+1}, 0')
    P.I(f's_mov_b32 s{d+2}, {nrec}')
    P.I(f's_mov_b32 s{d+3}, 0x20000')

def gen_prep(P, code_start, code_bytes, dbg):
    I = P.I
    P.raw('.p2align 8')
    P.raw('prep_kernel:')
    I('s_cmp_ge_u32 s2, 256')
    I('s_cbranch_scc1 Lp_end')
    I('s_load_dwordx4 s[4:7], s[0:1], 0')
    I('s_load_dwordx4 s[8:11], s[0:1], 16')
    I('s_load_dwordx2 s[12:13], s[0:1], 32')
    I('s_load_dwordx4 s[16:19], s[0:1], 48')
    I('s_load_dwordx2 s[14:15], s[0:1], 64')
    I('s_load_dwordx2 s[20:21], s[0:1], 88')
    if dbg.get('stamps'):
        I('s_memrealtime s[60:61]')
    I('v_lshrrev_b32 v1, 6, v0')
    I('v_and_b32 v2, 63, v0')
    I('v_readfirstlane_b32 s22, v1')
    I('v_lshlrev_b32 v3, 4, v2')
    I('v_lshlrev_b32 v4, 4, v0')
    P.wait(lg=0)
    srd(P, 24, 20, 21, 0x1000000)
    I('s_and_b32 s36, s2, 7')
    I('s_lshr_b32 s37, s2, 6')
    I('s_lshl_b32 s36, s36, 2')
    I('s_add_u32 s54, s36, s37')
    I('s_lshr_b32 s55, s2, 3')
    I('s_and_b32 s55, s55, 7')
    I('s_mul_i32 s36, s54, 81920')
    I('s_mul_i32 s37, s55, 160')
    I('s_add_u32 s36, s36, s37')
    I('s_mul_i32 s37, s22, 20480')
    I('s_add_u32 s36, s36, s37')
    srd(P, 56, 4, 5, 2048 * 1280)
    I('v_and_b32 v136, 15, v2')
    I('v_lshrrev_b32 v137, 4, v2')
    I('v_mul_u32_u24 v138, 1280, v136')
    I('v_lshl_add_u32 v138, v137, 3, v138')
    for ct in range(5):
        I(f'buffer_load_dwordx2 v[{140+2*ct}:{141+2*ct}], v138, s[56:59], s36 offen offset:{32*ct}')
    I('s_cmp_lt_u32 s2, 86')
    I('s_cbranch_scc1 Lp_t1')
    I('s_cmp_lt_u32 s2, 234')
    I('s_cbranch_scc1 Lp_t2')
    I('s_sub_u32 s23, s2, 234')
    I('s_cmp_ge_u32 s23, 16')
    I('s_cbranch_scc1 Lp_warm')
    I('s_lshl_b32 s23, s23, 12')
    I(f's_add_u32 s23, s23, {FLG}')
    for r in range(8, 12):
        I(f'v_mov_b32 v{r}, 0')
    I('buffer_store_dwordx4 v[8:11], v4, s[24:27], s23 offen')
    I('s_branch Lp_warm')
    P.forget()
    P.label('Lp_t2')
    I('v_and_b32 v5, 15, v2')
    I('v_lshrrev_b32 v6, 4, v2')
    I('s_cmp_lt_u32 s2, 194')
    I('s_cbranch_scc0 Lp_wo')
    I('s_sub_u32 s23, s2, 86')
    I('s_lshl_b32 s23, s23, 2')
    I('s_add_u32 s23, s23, s22')
    I('s_mul_i32 s36, s23, 1214')
    I('s_lshr_b32 s36, s36, 16')
    I('s_mul_i32 s37, s36, 54')
    I('s_sub_u32 s37, s23, s37')
    I('s_mul_i32 s38, s23, 5120')
    I(f's_add_u32 s38, s38, {W2F}')
    srd(P, 28, 14, 15, 1728 * 1280)
    I('s_lshl_b32 s37, s37, 5')
    I('v_lshrrev_b32 v7, 1, v6')
    I('v_lshlrev_b32 v7, 4, v7')
    I('v_and_b32 v8, 1, v6')
    I('v_lshl_add_u32 v7, v8, 2, v7')
    I('v_add_u32 v7, s37, v7')
    I('v_mov_b32 v8, 8')
    I('s_branch Lp_t2go')
    P.label('Lp_wo')
    I('s_sub_u32 s23, s2, 194')
    I('s_lshl_b32 s23, s23, 2')
    I('s_add_u32 s23, s23, s22')
    I('s_mul_i32 s36, s23, 3277')
    I('s_lshr_b32 s36, s36, 16')
    I('s_mul_i32 s37, s36, 20')
    I('s_sub_u32 s37, s23, s37')
    I('s_mul_i32 s38, s23, 5120')
    I(f's_add_u32 s38, s38, {WOF}')
    srd(P, 28, 12, 13, 640 * 1280)
    I('s_mul_i32 s39, s37, 52')
    I('s_lshr_b32 s39, s39, 8')
    I('s_mul_i32 s40, s39, 5')
    I('s_sub_u32 s40, s37, s40')
    I('s_lshl_b32 s40, s40, 2')
    I('s_mul_i32 s39, s39, 160')
    I('v_add_u32 v9, s40, v6')
    I('v_cmp_le_u32 vcc, 10, v9')
    I('v_mov_b32 v10, 10')
    I('v_mov_b32 v12, 80')
    I('v_cndmask_b32 v10, 0, v10, vcc')
    I('v_cndmask_b32 v12, 0, v12, vcc')
    I('v_sub_u32 v9, v9, v10')
    I('v_lshrrev_b32 v10, 1, v9')
    I('v_mul_u32_u24 v10, 20, v10')
    I('v_and_b32 v11, 1, v9')
    I('v_lshl_add_u32 v10, v11, 2, v10')
    I('v_subrev_u32 v11, 8, v9')
    I('v_mul_u32_u24 v11, 40, v11')
    I('v_add_u32 v11, 16, v11')
    I('v_cmp_le_u32 vcc, 8, v9')
    I('v_mov_b32 v8, 8')
    I('v_mov_b32 v13, 20')
    I('v_cndmask_b32 v7, v10, v11, vcc')
    I('v_cndmask_b32 v8, v8, v13, vcc')
    I('v_add_u32 v7, v7, v12')
    I('v_add_u32 v7, s39, v7')
    P.label('Lp_t2go')
    I('s_mul_i32 s36, s36, 160')
    I('s_movk_i32 s41, 1280')
    I('v_mul_lo_u32 v7, v7, s41')
    I('v_mul_lo_u32 v8, v8, s41')
    I('v_lshl_add_u32 v7, v5, 1, v7')
    I('v_add_u32 v8, v7, v8')
    for t in range(8):
        I(f'v_add_u32 v{16+t}, {1280*(t%4)}, v{7 if t < 4 else 8}')
    for ct in range(5):
        for t in range(8):
            I(f'buffer_load_ushort v{32+8*ct+t}, v{16+t}, s[28:31], s36 offen offset:{32*ct}')
    for ct in range(5):
        for d in range(4):
            I(f'v_lshl_or_b32 v{80+4*ct+d}, v{32+8*ct+2*d+1}, 16, v{32+8*ct+2*d}')
        if ct < 4:
            I(f'buffer_store_dwordx4 v[{80+4*ct}:{83+4*ct}], v3, s[24:27], s38 offen offset:{1024*ct}')
        else:
            I('s_add_u32 s38, s38, 4096')
            I(f'buffer_store_dwordx4 v[{80+4*ct}:{83+4*ct}], v3, s[24:27], s38 offen')
    I('s_branch Lp_warm')
    P.forget()
    P.label('Lp_t1')
    I('v_and_b32 v5, 31, v2')
    I('v_lshrrev_b32 v6, 5, v2')
    I('s_mul_i32 s42, s22, 160')
    I('s_cmp_lt_u32 s2, 54')
    I('s_cbranch_scc0 Lp_wq')
    I('s_mov_b32 s41, 3456')
    I('s_lshl_b32 s36, s2, 6')
    I(f's_mul_i32 s38, s2, {TILE}')
    I(f's_add_u32 s38, s38, {W1F}')
    srd(P, 28, 16, 17, 640 * 3456)
    srd(P, 32, 18, 19, 3456)
    I('v_lshlrev_b32 v9, 1, v5')
    I('s_mov_b32 s43, 2')
    I('s_branch Lp_t1go')
    P.label('Lp_wq')
    I('s_sub_u32 s23, s2, 54')
    I('s_movk_i32 s41, 1280')
    I('s_mul_i32 s36, s23, 40')
    I(f's_mul_i32 s38, s23, {TILE}')
    I(f's_add_u32 s38, s38, {WQF}')
    srd(P, 28, 6, 7, 640 * 1280)
    srd(P, 32, 18, 19, 0)
    I('v_lshlrev_b32 v9, 1, v5')
    I(f'v_mov_b32 v10, {OOB}')
    I('v_cmp_gt_u32 vcc, 20, v5')
    I('s_lshr_b32 s43, s23, 2')
    I('s_and_b32 s44, s23, 3')
    I('v_cndmask_b32 v9, v10, v9, vcc')
    P.label('Lp_t1go')
    I('v_lshlrev_b32 v30, 1, v5')
    I('buffer_load_ushort v31, v30, s[32:35], s36 offen')
    I('v_lshlrev_b32 v7, 2, v6')
    I('v_mul_lo_u32 v8, v7, s41')
    I('v_add_u32 v16, v8, v9')
    I('v_add_u32 v128, v8, v16')
    I('s_mul_i32 s45, s41, 13')
    for t in range(1, 8):
        I(f'v_add_u32 v{16+t}, {"s45" if t == 4 else "s41"}, v{15+t}')
        I(f'v_add_u32 v{128+t}, s41, v{127+t}')
    krow = lambda k: 80 * (k // 5) + (64 if k % 5 == 4 else 32 * ((k % 5) // 2) + 8 * (k % 5 % 2))
    for k in range(10):
        I(f's_add_u32 s46, s42, {krow(k)}')
        I('s_mul_i32 s46, s46, s41')
        I('s_add_u32 s46, s46, s36')
        for t in range(8):
            I(f'buffer_load_ushort v{40+8*k+t}, v{(128 if k % 5 == 4 else 16)+t}, s[28:31], s46 offen')
    I('s_cmp_ge_u32 s43, 2')
    I('s_cbranch_scc1 Lp_nokv')
    I('s_cmp_eq_u32 s43, 0')
    I('s_cselect_b32 s48, s8, s10')
    I('s_cselect_b32 s49, s9, s11')
    I('s_mov_b32 s50, 25600')
    I('s_mov_b32 s51, 0x20000')
    I('s_lshl_b32 s44, s44, 3')
    I('v_subrev_u32 v10, 24, v5')
    I('v_add_u32 v10, s44, v10')
    I('v_cmp_le_u32 vcc, 24, v5')
    I('v_cmp_gt_u32 s[52:53], 20, v10')
    I('v_mul_u32_u24 v11, 40, v7')
    I('v_lshl_add_u32 v13, v11, 1, 0')
    I('v_lshl_add_u32 v11, v10, 1, v11')
    I('v_lshl_add_u32 v13, v10, 1, v13')
    I('s_and_b64 s[52:53], s[52:53], vcc')
    I('s_mov_b64 exec, s[52:53]')
    I('s_cbranch_execz Lp_kvdone')
    for k in range(10):
        I(f's_add_u32 s46, s42, {krow(k)}')
        I('s_mul_i32 s46, s46, 40')
        for t in range(8):
            if k % 5 == 4:
                P.I(f'buffer_load_ushort v{40+8*k+t}, v13, s[48:51], s46 offen offset:{40*t}', nowaw=True)
            else:
                P.I(f'buffer_load_ushort v{40+8*k+t}, v11, s[48:51], s46 offen offset:{40*(t if t < 4 else t + 12)}', nowaw=True)
    P.label('Lp_kvdone')
    I('s_mov_b64 exec, -1')
    P.label('Lp_nokv')
    P.drain()
    I('v_mov_b32 v12, 0')
    I('s_mov_b32 s47, 0x3f803f80')
    I('s_mul_i32 s46, s22, 10240')
    I('s_add_u32 s46, s46, s38')
    for k in range(10):
        b = 120 + 4 * (k % 2)
        for d in range(4):
            I(f'v_lshl_or_b32 v{b+d}, v{40+8*k+2*d+1}, 16, v{40+8*k+2*d}')
        for d in range(4):
            I(f'v_dot2_f32_bf16 v12, v{b+d}, s47, v12')
        I(f'buffer_store_dwordx4 v[{b}:{b+3}], v3, s[24:27], s46 offen offset:{1024*(k%4)}')
        if k % 4 == 3:
            I('s_add_u32 s46, s46, 4096')
    I('v_mov_b32 v13, v12')
    I('v_permlane32_swap_b32 v12, v13')
    I('v_add_f32 v12, v12, v13')
    I('s_lshl_b32 s46, s22, 7')
    I('v_lshl_add_u32 v14, v5, 2, s46')
    I('ds_write_b32 v14, v12')
    P.wait(lg=0)
    I('s_barrier')
    I('s_cmp_lg_u32 s22, 0')
    I('s_cbranch_scc1 Lp_warm')
    I('v_lshlrev_b32 v14, 2, v5')
    I('ds_read_b32 v16, v14')
    I('ds_read_b32 v17, v14 offset:128')
    I('ds_read_b32 v18, v14 offset:256')
    I('ds_read_b32 v19, v14 offset:384')
    I('v_add_f32 v16, v16, v17')
    I('v_add_f32 v18, v18, v19')
    I('v_add_f32 v16, v16, v18')
    I('v_cvt_pk_bf16_f32 v20, v16, v16')
    I('v_and_b32 v17, 0xffff0000, v20')
    I('v_sub_f32 v17, v16, v17')
    I('v_cvt_pk_bf16_f32 v17, v17, v17')
    I('v_and_b32 v17, 0xffff, v17')
    I('v_lshl_or_b32 v21, v31, 16, v17')
    I('v_mov_b32 v22, v31')
    I('v_mov_b32 v23, 0')
    I('v_cmp_eq_u32 vcc, 0, v6')
    I(f's_add_u32 s38, s38, {40*1024}')
    I('v_cndmask_b32 v20, 0, v20, vcc')
    I('v_cndmask_b32 v21, 0, v21, vcc')
    I('v_cndmask_b32 v22, 0, v22, vcc')
    I('buffer_store_dwordx4 v[20:23], v3, s[24:27], s38 offen')
    P.forget()
    P.label('Lp_warm')
    P.drain()
    I('v_mov_b32 v150, 0')
    I('v_mov_b32 v151, 0')
    I('s_mov_b32 s47, 0x3f803f80')
    for r in range(10):
        I(f'v_dot2_f32_bf16 v150, v{140+r}, s47, v150')
        I(f'v_dot2_f32_bf16 v151, v{140+r}, v{140+r}, v151')
    I('s_lshl_b32 s36, s54, 2')
    I('s_add_u32 s36, s36, s22')
    I('s_lshl_b32 s36, s36, 3')
    I('s_add_u32 s36, s36, s55')
    I('s_mul_i32 s37, s36, 2560')
    I('s_lshl_b32 s36, s36, 7')
    I(f's_add_u32 s36, s36, {STT}')
    srd_off(P, 56, 20, XS, 0x300000)
    I('v_lshrrev_b32 v138, 1, v137')
    I('v_lshlrev_b32 v138, 8, v138')
    I('v_lshl_add_u32 v138, v136, 4, v138')
    I('v_and_b32 v139, 1, v137')
    I('v_lshl_add_u32 v138, v139, 3, v138')
    I('buffer_store_dwordx4 v[140:143], v3, s[56:59], s37 offen')
    I('buffer_store_dwordx4 v[144:147], v3, s[56:59], s37 offen offset:1024')
    I('buffer_store_dwordx2 v[148:149], v138, s[56:59], s37 offen offset:2048')
    for sw in ('16', '32'):
        for r in (150, 151):
            I(f'v_mov_b32 v{r+2}, v{r}')
        for r in (150, 151):
            I(f'v_permlane{sw}_swap_b32 v{r}, v{r+2}')
        for r in (150, 151):
            I(f'v_add_f32 v{r}, v{r}, v{r+2}')
    I('v_lshlrev_b32 v136, 3, v136')
    I('v_lshl_add_u32 v136, v137, 30, v136')
    I('buffer_store_dwordx2 v[150:151], v136, s[56:59], s36 offen')
    I('s_lshr_b32 s37, s2, 3')
    if code_start:
        I('s_getpc_b64 s[32:33]')
        P.label('Lp_pc')
        I(f's_add_u32 s32, s32, {code_start}-Lp_pc')
        I('s_addc_u32 s33, s33, 0')
        I(f's_mov_b32 s34, {code_bytes}')
        I('s_mov_b32 s35, 0x20000')
        I('s_lshl_b32 s37, s37, 12')
        I('buffer_load_dwordx4 v[44:47], v4, s[32:35], s37 offen')
    if dbg.get('stamps'):
        I('s_memrealtime s[62:63]')
        P.drain()
        I('s_memrealtime s[64:65]')
        I('s_waitcnt lgkmcnt(0)')
        I('v_mov_b32 v8, s60')
        I('v_mov_b32 v9, s62')
        I('v_mov_b32 v10, s64')
        I('s_lshl_b32 s36, s2, 2')
        I('s_add_u32 s36, s36, s22')
        I('s_lshl_b32 s36, s36, 4')
        I('s_add_u32 s36, s36, 0xE00000')
        I('v_lshlrev_b32 v11, 24, v2')
        I('buffer_store_dwordx3 v[8:10], v11, s[24:27], s36 offen')
    P.label('Lp_end')
    I('s_endpgm')
    P.forget()
```

```python
import sys, os
sys.path.insert(0, os.path.dirname(os.path.abspath(__file__)))
from asmlib import *
from layout import *
from prep import gen_prep
from main import Gen

NAME = 'interleave_layers__grouped_kv_mqa__dense_activation_mish__prompt'

def kd(name, vgpr, accum):
    return f'''.p2align 6
.amdhsa_kernel {name}
  .amdhsa_next_free_vgpr {vgpr}
  .amdhsa_next_free_sgpr 102
  .amdhsa_accum_offset {accum}
  .amdhsa_group_segment_fixed_size 0
  .amdhsa_kernarg_size 96
  .amdhsa_user_sgpr_count 2
  .amdhsa_user_sgpr_kernarg_segment_ptr 1
  .amdhsa_system_sgpr_workgroup_id_x 1
.end_amdhsa_kernel
'''

def build(dbg=None):
    ref = open(f'cdna_kernels/{NAME}.s.ref').read().splitlines() if os.path.exists(f'cdna_kernels/{NAME}.s.ref') else []
    hdr = [l for l in ref if l.startswith(';   offset') or l.startswith('; Kernarg')]
    hdr += ['; Generated by my own generator (gen/*.py): weight re-layout, QKV, then one fused launch per layer.',
            '; @launch kernel=prep_kernel grid=(256,1,1) block=(256,1,1) lds=512',
            f'; @launch kernel=qkv_kernel grid=(256,1,1) block=(256,1,1) lds={LDS_BYTES}',
            f'; @launch kernel=layer1_kernel grid=(256,1,1) block=(256,1,1) lds={LDS_BYTES}',
            f'; @launch kernel=layer2_kernel grid=(256,1,1) block=(256,1,1) lds={LDS_BYTES}']
    P = Prog()
    gen_prep(P, 'layer2_kernel', 'Lcode_end-layer2_kernel', dbg or {})
    g = Gen(P, dbg)
    g.build()
    P.label('Lcode_end')
    out = '\n'.join(hdr) + '\n.amdgcn_target "amdgcn-amd-amdhsa--gfx950"\n.text\n'
    for k in ('prep_kernel', 'qkv_kernel', 'layer1_kernel', 'layer2_kernel'):
        out += f'.globl {k}\n.type {k},@function\n'
    out += P.text()
    out += '.section .rodata,"a"\n' + kd('prep_kernel', 160, 160)
    for k in ('qkv_kernel', 'layer1_kernel', 'layer2_kernel'):
        out += kd(k, 512, 256)
    return out, P

if __name__ == '__main__':
    dbg = {a: True for a in sys.argv[2:]}
    out, P = build(dbg)
    if dbg.get('plainld'):
        out = '\n'.join(l.replace(' sc1', '') if ('buffer_load_dwordx' in l) else l for l in out.split('\n'))
    if dbg.get('ntld'):
        out = '\n'.join(l.replace(' sc1', ' nt') if ('buffer_load_dwordx' in l) else l for l in out.split('\n'))
    if dbg.get('sc0ld'):
        out = '\n'.join(l.replace(' sc1', ' sc0') if ('buffer_load_dwordx' in l) else l for l in out.split('\n'))
    if dbg.get('plainst'):
        import re
        out = '\n'.join(re.sub(r' sc1$', '', l) if 'buffer_store' in l else l for l in out.split('\n'))
    path = sys.argv[1] if len(sys.argv) > 1 else f'cdna_kernels/{NAME}.s'
    open(path, 'w').write(out)
    print('wrote', path, len(out), 'bytes; nops', P.nnop, P.count)
```

```python
import re

VB, AB, SB = 0, 256, 1000
VCC = (SB + 106, SB + 107)
EXEC = (SB + 126, SB + 127)
M0 = SB + 124
SCC = SB + 200

_reg_re = re.compile(r'^(-?)(abs\()?\|?([vas])(\d+|\[(\d+):(\d+)\])\)?\|?$')


def regs_of(tok):
    tok = tok.strip()
    if tok == 'vcc':
        return list(VCC)
    if tok == 'vcc_lo':
        return [VCC[0]]
    if tok == 'vcc_hi':
        return [VCC[1]]
    if tok == 'exec':
        return list(EXEC)
    if tok == 'exec_lo':
        return [EXEC[0]]
    if tok == 'exec_hi':
        return [EXEC[1]]
    if tok == 'm0':
        return [M0]
    m = _reg_re.match(tok)
    if not m:
        return []
    base = {'v': VB, 'a': AB, 's': SB}[m.group(3)]
    if m.group(5) is not None:
        return list(range(base + int(m.group(5)), base + int(m.group(6)) + 1))
    return [base + int(m.group(4))]


def R(base, n=1):
    k, i = ('v', base) if base < 256 else ('a', base - 256)
    assert i + n <= 256, (base, n)
    return f"{k}{i}" if n == 1 else f"{k}[{i}:{i + n - 1}]"


def S(i, n=1):
    return f"s{i}" if n == 1 else f"s[{i}:{i + n - 1}]"


TRANS = ('v_exp_f32', 'v_log_f32', 'v_rcp_f32', 'v_rsq_f32', 'v_sqrt_f32', 'v_sin_f32', 'v_cos_f32')
NODST_S = ('s_cmp', 's_cbranch', 's_branch', 's_barrier', 's_waitcnt', 's_nop', 's_setprio', 's_sleep', 's_endpgm',
           's_bitcmp', 's_setpc')


class Ins:
    __slots__ = ('text', 'op', 'cls', 'rd', 'wr', 'passes', 'srcC', 'srcAB', 'ws', 'wide', 'dpp', 'perm', 'lane',
                 'isload', 'isstore', 'dma', 'tag', 'trans', 'data', 'dotab')


def parse(text):
    t = text.split(';')[0].strip()
    i = Ins()
    i.text = text
    sp = t.split(None, 1)
    op = sp[0]
    i.op = op
    rest = sp[1] if len(sp) > 1 else ''
    ops = [x.strip() for x in rest.split(',')] if rest else []
    mods = ''
    if ops:
        last = ops[-1].split(None, 1)
        if len(last) > 1:
            ops[-1] = last[0]
            mods = last[1]
    i.rd, i.wr = set(), set()
    i.passes = 0
    i.srcC, i.srcAB = set(), set()
    i.ws = 1
    i.wide = i.dpp = i.perm = i.lane = i.isload = i.isstore = i.dma = i.trans = False
    i.tag = None
    i.data = set()
    i.dotab = set()
    rg = [regs_of(o) for o in ops]
    if op.startswith('v_mfma') or op.startswith('v_smfmac'):
        i.cls = 'mfma'
        i.passes = 4 if '16x16' in op else 8
        i.wr = set(rg[0])
        i.srcAB = set(rg[1]) | set(rg[2])
        if op.startswith('v_smfmac'):
            i.srcC = set(rg[0])
            i.srcAB |= set(rg[3])
        else:
            i.srcC = set(rg[3])
        i.rd = i.srcAB | i.srcC
    elif op.startswith('v_'):
        i.cls = 'valu'
        base = op.replace('_e32', '').replace('_e64', '').replace('_dpp', '').replace('_sdwa', '')
        i.trans = base in TRANS
        i.wr = set(rg[0])
        srcs = rg[1:]
        if re.match(r'v_(add|sub|subrev|addc|subb|subbrev)_co_', base):
            i.wr |= set(rg[1])
            srcs = rg[2:]
        for r in srcs:
            i.rd |= set(r)
        if base.startswith('v_fmac') or base.startswith('v_dot2c') or base.startswith('v_permlane') or base == 'v_swap_b32' \
                or base.startswith('v_writelane') or base.startswith('v_pk_fmac'):
            i.rd |= set(rg[0])
        if base.startswith('v_permlane') or base == 'v_swap_b32':
            i.wr |= set(rg[1])
        if base.startswith('v_dot'):
            i.dotab = set(rg[1]) | set(rg[2])
        if base.startswith('v_permlane'):
            i.perm = True
        if 'row_' in mods or 'quad_perm' in mods or 'wave_' in mods:
            i.dpp = True
            i.rd |= set(rg[0])
        if base.startswith('v_readfirstlane') or base.startswith('v_readlane'):
            i.lane = True
        if base.startswith('v_cmpx'):
            raise Exception('avoid v_cmpx')
        i.rd |= set(EXEC)
    elif op.startswith('buffer_') or op.startswith('global_'):
        i.cls = 'vmem'
        allm = mods.split()
        if op in ('buffer_wbl2', 'buffer_inv'):
            i.isstore = True
        elif op.startswith('buffer_load'):
            if 'lds' in allm:
                i.dma = True
                for r in rg:
                    i.rd |= set(r)
                i.rd.add(M0)
            else:
                i.isload = True
                i.wr = set(rg[0])
                for r in rg[1:]:
                    i.rd |= set(r)
        elif op.startswith('buffer_store') or op.startswith('buffer_atomic'):
            i.isstore = True
            i.data = set(rg[0])
            for r in rg:
                i.rd |= set(r)
            i.wide = len(rg[0]) >= 3
        elif op.startswith('global_load'):
            i.isload = True
            i.wr = set(rg[0])
            for r in rg[1:]:
                i.rd |= set(r)
        elif op.startswith('global_store') or op.startswith('global_atomic'):
            i.isstore = True
            i.data = set(rg[1])
            for r in rg:
                i.rd |= set(r)
            i.wide = len(rg[1]) >= 3
        else:
            raise Exception(text)
    elif op.startswith('ds_'):
        i.cls = 'lds'
        if op.startswith('ds_read') or op.startswith('ds_bpermute') or op.startswith('ds_swizzle'):
            i.isload = True
            i.wr = set(rg[0])
            for r in rg[1:]:
                i.rd |= set(r)
        else:
            i.isstore = True
            for r in rg:
                i.rd |= set(r)
    elif op.startswith('s_load') or op.startswith('s_memtime') or op.startswith('s_memrealtime'):
        i.cls = 'smem'
        i.isload = True
        i.wr = set(rg[0])
        for r in rg[1:]:
            i.rd |= set(r)
    elif op.startswith('s_'):
        i.cls = 'salu'
        if any(op.startswith(p) for p in NODST_S):
            for r in rg:
                i.rd |= set(r)
            if op == 's_nop':
                i.ws = int(ops[0], 0) + 1
        else:
            i.wr = set(rg[0])
            for r in rg[1:]:
                i.rd |= set(r)
            if 'saveexec' in op:
                i.wr |= set(EXEC)
    else:
        raise Exception('unknown ' + text)
    return i


MF_VALU = {4: 8, 8: 12}
MF_COVL = {4: 6, 8: 10}
MF_WARC = {4: 3, 8: 7}


class Prog:
    def __init__(self):
        self.out = []
        self.vm = []
        self.lg = []
        self.hist = []
        self.pos = 0
        self.nnop = 0
        self.count = {}

    def raw(self, text):
        self.out.append(text)

    def comment(self, text):
        self.out.append('; ' + text)

    def label(self, name):
        self.out.append(name + ':')

    def _issue(self, ins):
        self.out.append('  ' + ins.text)
        self.hist.append((ins, self.pos))
        self.pos += ins.ws
        if len(self.hist) > 40:
            self.hist.pop(0)
        self.count[ins.cls] = self.count.get(ins.cls, 0) + 1

    def _wait(self, vm=None, lg=None):
        parts = []
        if vm is not None and vm < len(self.vm):
            vm = min(vm, 63)
            parts.append(f'vmcnt({vm})')
            self.vm = self.vm[len(self.vm) - vm:] if vm > 0 else []
        if lg is not None and lg < len(self.lg):
            if any(e.cls == 'smem' for e in self.lg):
                lg = 0
            lg = min(lg, 15)
            parts.append(f'lgkmcnt({lg})')
            self.lg = self.lg[len(self.lg) - lg:] if lg > 0 else []
        if parts:
            self._issue(parse('s_waitcnt ' + ' '.join(parts)))

    def wait(self, vm=None, lg=None):
        self._wait(vm, lg)

    def wait_tag(self, tag):
        idx = [k for k, e in enumerate(self.vm) if e.tag == tag]
        if idx:
            self._wait(vm=len(self.vm) - 1 - max(idx))

    def need(self, base, n):
        regs = set(range(base, base + n))
        nv = nl = None
        for k, e in enumerate(self.vm):
            if e.isload and (e.wr & regs):
                nv = len(self.vm) - 1 - k
        for k, e in enumerate(self.lg):
            if e.isload and (e.wr & regs):
                nl = len(self.lg) - 1 - k
        self._wait(nv, nl)

    def forget(self):
        self.vm, self.lg = [], []

    def drain(self):
        self._issue(parse('s_waitcnt vmcnt(0) lgkmcnt(0)'))
        self.forget()

    def I(self, text, tag=None, nowaw=False):
        ins = parse(text)
        ins.tag = tag
        touch = ins.rd | ins.wr
        need_vm = need_lg = None
        for k, e in enumerate(self.vm):
            if e.isload and (e.wr & (ins.rd if (nowaw and ins.cls == 'vmem') else touch)):
                need_vm = len(self.vm) - 1 - k
        for k, e in enumerate(self.lg):
            if e.isload and (e.wr & (ins.rd if (nowaw and ins.cls == 'smem') else touch)):
                need_lg = len(self.lg) - 1 - k
        if need_vm is not None or need_lg is not None:
            self._wait(need_vm, need_lg)
        need = 0
        for (p, at) in self.hist:
            dist = self.pos - at - p.ws
            req = 0
            if p.cls == 'valu':
                vw = {r for r in p.wr if r < SB}
                sw = {r for r in p.wr if r >= SB}
                if ins.cls == 'mfma' and (vw & ins.rd):
                    req = max(req, 2)
                if p.op.startswith('v_dot') and ins.cls in ('valu', 'vmem', 'lds', 'mfma') and (vw & (ins.rd | ins.wr)):
                    acc_only = ins.op == p.op and not (vw & ins.dotab)
                    if not acc_only:
                        req = max(req, 3)
                if ins.cls == 'valu':
                    if p.trans and not ins.trans and (vw & ins.rd):
                        req = max(req, 1)
                    if (ins.perm or ins.dpp) and (vw & ins.rd):
                        req = max(req, 2)
                    if ins.lane and (vw & ins.rd):
                        req = max(req, 1)
                    if sw & ins.rd:
                        req = max(req, 4 if ins.lane or ins.op.startswith('v_div_fmas') else 2)
                if p.trans and ins.cls in ('vmem', 'lds') and (vw & ins.rd):
                    req = max(req, 1)
                if ins.cls == 'vmem' and (sw & ins.rd):
                    req = max(req, 5)
                if ins.cls in ('salu', 'smem') and (sw & ins.rd):
                    req = max(req, 1)
            elif p.cls == 'mfma':
                if ins.cls == 'mfma':
                    if p.wr & ins.srcAB:
                        req = max(req, MF_VALU[p.passes])
                    if p.wr & ins.srcC:
                        if not (p.wr == ins.srcC and p.passes == ins.passes):
                            req = max(req, MF_COVL[p.passes])
                    elif (p.wr & ins.wr) and not (p.wr == ins.wr and p.passes == ins.passes):
                        req = max(req, MF_COVL[p.passes])
                elif ins.cls == 'valu':
                    if p.wr & (ins.rd | ins.wr):
                        req = max(req, MF_VALU[p.passes])
                    if p.srcC & ins.wr:
                        req = max(req, MF_WARC[p.passes])
                elif ins.cls in ('vmem', 'lds'):
                    if p.wr & (ins.rd | ins.wr):
                        req = max(req, MF_VALU[p.passes])
                    if p.srcC & ins.wr:
                        req = max(req, MF_WARC[p.passes])
            elif p.cls == 'salu':
                if M0 in p.wr and ins.dma:
                    req = max(req, 1)
            elif p.cls == 'vmem':
                if p.wide and (p.data & ins.wr):
                    req = max(req, 2)
            need = max(need, req - dist)
        while need > 0:
            n = min(need, 16)
            self._issue(parse(f's_nop {n - 1}'))
            self.nnop += 1
            need -= n
        self._issue(ins)
        if ins.cls == 'vmem':
            self.vm.append(ins)
        elif ins.cls in ('lds', 'smem'):
            self.lg.append(ins)
        if ins.op == 's_waitcnt':
            m = re.search(r'vmcnt\((\d+)\)', ins.text)
            if m:
                n = int(m.group(1))
                self.vm = self.vm[len(self.vm) - n:] if 0 < n < len(self.vm) else ([] if n == 0 else self.vm)
            m = re.search(r'lgkmcnt\((\d+)\)', ins.text)
            if m:
                n = int(m.group(1))
                self.lg = self.lg[len(self.lg) - n:] if 0 < n < len(self.lg) else ([] if n == 0 else self.lg)
        return ins

    def run(self, items):
        for it in items:
            if callable(it):
                it(self)
            elif isinstance(it, tuple):
                self.I(it[0], tag=it[1], nowaw=(it[1] == 'touch'))
            else:
                self.I(it)

    def text(self):
        return '\n'.join(self.out) + '\n'


def weave(main, fill, start=0, end=None):
    end = len(main) if end is None else end
    n = end - start
    out = []
    k = 0
    for j, m in enumerate(main):
        out.append(m)
        if start <= j < end:
            tgt = (j - start + 1) * len(fill) // n
            while k < tgt:
                out.append(fill[k])
                k += 1
    assert k == len(fill)
    return out


def flat(x):
    out = []
    for e in x:
        if isinstance(e, list):
            out.extend(flat(e))
        else:
            out.append(e)
    return out


def NEED(base, n=4):
    return lambda P: P.need(base, n)


def cost(it):
    if callable(it):
        return 0
    t = it[0] if isinstance(it, tuple) else it
    op = t.split()[0]
    return 8 if op in TRANS else 4


def weave_cost(main, fill):
    tot = sum(cost(f) for f in fill)
    out, k, acc, held = [], 0, 0, []
    for j, m in enumerate(main):
        out.append(m)
        out += held
        held = []
        tgt = tot * (j + 1) / len(main)
        while k < len(fill) and acc + cost(fill[k]) / 2 <= tgt:
            f = fill[k]
            (held if isinstance(f, tuple) else out).append(f)
            acc += cost(f)
            k += 1
    out += held + fill[k:]
    return out
```

```python
from asmlib import *
from layout import *

OOB = 0x40000000

def srd(P, d, blo, bhi, nrec):
    if d != blo:
        P.I(f's_mov_b32 s{d}, s{blo}')
        P.I(f's_mov_b32 s{d+1}, s{bhi}')
    P.I(f's_mov_b32 s{d+2}, {nrec}')
    P.I(f's_mov_b32 s{d+3}, 0x20000')

def srd_off(P, d, blo, off, nrec):
    P.I(f's_add_u32 s{d}, s{blo}, {off}')
    P.I(f's_addc_u32 s{d+1}, s{blo+1}, 0')
    P.I(f's_mov_b32 s{d+2}, {nrec}')
    P.I(f's_mov_b32 s{d+3}, 0x20000')

sMODE, sWS, sOUT, sBLK, sRB, sHG, sW = 3, 4, 6, 8, 10, 11, 12
sLB, sLBN = 20, 22
rA, rB, rC, rD, rE, rFL, rF, rG, rH = 24, 28, 32, 36, 40, 44, 48, 52, 56
sK8 = 60
sKV, sRUN, sFB, sMASK8, sMASK1, sFLO = 74, 75, 76, 77, 78, 79
sP0, sP1 = 80, 81
sFAST, sLN2 = 73, 92
sXO = 70
sT = 82
vLANE, vL16, vL16B, vSIG, vL4, vIDX, vT0, vT1 = 0, 1, 2, 3, 4, 5, 6, 7
S_ = [8, 24, 40]
Q16 = [56 + 4 * q for q in range(4)]
Q8 = [72 + 2 * q for q in range(4)]
O_ = [80 + 16 * q for q in range(4)]
K16 = [144 + 4 * j for j in range(3)]
K8P = [156 + 4 * j for j in range(2)]
V_ = [164 + 8 * j for j in range(3)]
W1A = [188 + 4 * k for k in range(17)] + [256 + 4 * k for k in range(24)]
W1B = [256 + 96 + 4 * k for k in range(40)] + [168]
W2R = [172 + 4 * k for k in range(4)] + W1A + W1B[:25]
HBUF = W1B[25:41] + [108 + 4 * k for k in range(15)] + [56]
WQR = W2R[:41]
assert len(W2R) == 70 and len(HBUF) == 32

SRD = lambda r: f's[{r}:{r+3}]'
MF32 = lambda d, a, b, c=None: f'v_mfma_f32_32x32x16_bf16 {R(d,16)}, {R(a,4)}, {R(b,4)}, {"0" if c is None else R(c,16)}'
MF8 = lambda d, a, b: f'v_mfma_f32_32x32x8_bf16 {R(d,16)}, {R(a,2)}, {R(b,2)}, {R(d,16)}'
SMF = lambda d, a, b: f'v_smfmac_f32_32x32x32_bf16 {R(d,16)}, {R(a,4)}, {R(b,8)}, v{vIDX}'
MF16 = lambda d, a, b, first: f'v_mfma_f32_16x16x32_bf16 {R(d,4)}, {R(a,4)}, {R(b,4)}, {"0" if first else R(d,4)}'


def fragload(dst, srd_, f, extra=''):
    so = '0' if f < 8 else f's{sK8 + f // 8}'
    vo = vL16B if (f % 8) >= 4 else vL16
    return f'buffer_load_dwordx4 {R(dst,4)}, v{vo}, {SRD(srd_)}, {so} offen offset:{(f % 4) * 1024}{extra}'
```

```python
from asmlib import *
from layout import *
from common import *

L_WB = 83456
L_KV = L_WB + 51200
L_ROLE = L_KV
L_CS = L_ROLE + 20480
L_ZERO = LDS_BYTES - 8
assert L_KV + 28 * 1024 <= L_ZERO


def krow(k):
    return 80 * (k // 5) + (64 if k % 5 == 4 else 32 * ((k % 5) // 2) + 8 * (k % 5 % 2))


def gen_front(G, code_start, code_bytes):
    P = G.P
    I = P.I
    rX, rWQ, rKV, rRS, rDST, rBI = 56, rA, 60, 64, 84, 88
    sTYPE, sDST, sST5, sROFF, sONE, sA, sB2, sWO = 68, 69, 72, 73, 74, 75, 76, 77
    RR = 256
    RF = 256 + 40
    DF = [256 + 80, 256 + 84]
    DUM = 256 + 88
    W = [92 + 4 * k for k in range(41)]
    ACC = [8, 24]
    BB = [72 + 4 * j for j in range(5)]
    BX, RS = [64, 68], [46, 47]
    vQ, vT16, vRO, vXD, vRL = 8, 9, 10, 12, 20
    RLH = 220
    RES = 240
    P.raw('.p2align 8')
    P.raw('front_kernel:')
    I('s_cmp_ge_u32 s2, 256')
    I('s_cbranch_scc1 Lend')
    I(f's_getpc_b64 s[{rKV}:{rKV+1}]')
    P.label('Lf_pc')
    I('s_load_dwordx4 s[40:43], s[0:1], 0')
    I(f's_mov_b32 s{rKV+2}, Lcode_end-Lf_pc')
    I(f's_mov_b32 s{rKV+3}, 0x20000')
    I(f's_lshr_b32 s13, s2, 3')
    I(f's_lshl_b32 s13, s13, 12')
    I(f'v_lshlrev_b32 v{vRO}, 4, v0')
    I(f'buffer_load_dwordx4 {R(DUM,4)}, v{vRO}, {SRD(rKV)}, s13 offen')
    I(f's_load_dwordx2 s[{sWS}:{sWS+1}], s[0:1], 88')
    I('s_load_dwordx4 s[44:47], s[0:1], 16')
    I('s_load_dwordx2 s[48:49], s[0:1], 32')
    I('s_load_dwordx4 s[52:55], s[0:1], 48')
    I('s_load_dwordx2 s[50:51], s[0:1], 64')
    I(f's_mov_b32 s{sMODE}, 0')
    G.stamp(0)
    G.ids()
    for i in range(5):
        d = vXD + i
        I(f'v_add_u32 v{vT0}, {64*i}, v{vLANE}')
        I(f'v_mul_u32_u24 v{vT1}, 3277, v{vT0}')
        I(f'v_lshrrev_b32 v{vT1}, 18, v{vT1}')
        I(f'v_mul_u32_u24 v{d}, 80, v{vT1}')
        I(f'v_sub_u32 v{vT0}, v{vT0}, v{d}')
        I(f'v_xor_b32 v{vT0}, v{vT0}, v{vT1}')
        I(f'v_add_u32 v{vT0}, v{vT0}, v{d}')
        I(f'v_lshlrev_b32 v{d}, 4, v{vT0}')
    I(f's_mul_i32 s13, s2, 3200')
    I(f's_mul_i32 s81, s{sHG}, 160')
    I(f's_lshr_b32 s16, s{sBLK}, 3')
    I(f's_mul_i32 s16, s16, 20480')
    I(f's_mul_i32 m0, s{sW}, 20480')
    sXR, sHO = 80, 81
    I(f's_mov_b32 s{sXR}, 0')
    I(f'v_min_u32 v{vRO}, 3184, v{vRO}')
    P.wait(lg=0)
    srd(P, rWQ, 42, 43, 640 * 1280)
    P.I(f'buffer_load_dwordx4 {R(DUM,4)}, v{vRO}, {SRD(rWQ)}, s13 offen', nowaw=True)
    srd_off(P, rX, 40, 's16', 20480)
    xd = []
    for n in range(4):
        for i in range(5):
            g = [(f'buffer_load_dwordx4 v{vXD+i}, {SRD(rX)}, s{sXR} offen lds', 'x'), 's_add_u32 m0, m0, 1024']
            if n < 3:
                g.append(f'v_xor_b32 v{vXD+i}, {(64*n) ^ (64*(n+1))}, v{vXD+i}')
            if i == 4:
                g.append(f's_add_u32 s{sXR}, s{sXR}, 5120')
            xd.append(g)
    NX = int(G.dbg.get('nx', 0))
    I(f's_mul_i32 s13, s{sHG}, 2560')
    for i in range(3):
        P.I(f'buffer_load_dwordx4 {R(DUM,4)}, v{vL16}, {SRD(rX)}, s13 offen offset:{(0, 1024, 1536)[i]}', nowaw=True)
    P.run(flat(xd[:NX]))
    G.stamp(10)
    I(f'v_and_b32 v{vT16}, 15, v{vLANE}')
    I(f'v_lshrrev_b32 v{vQ}, 4, v{vLANE}')
    I(f'v_mul_u32_u24 v{vRO}, 1280, v{vT16}')
    I(f'v_lshl_add_u32 v{vRO}, v{vQ}, 3, v{vRO}')
    vWO = 232
    for i in range(5):
        d = vWO + i
        I(f'v_add_u32 v{vT0}, {64*i}, v{vLANE}')
        I(f'v_mul_u32_u24 v{vT1}, 6554, v{vT0}')
        I(f'v_lshrrev_b32 v{vT1}, 16, v{vT1}')
        I(f'v_mul_u32_u24 v{d}, 10, v{vT1}')
        I(f'v_sub_u32 v{vT0}, v{vT0}, v{d}')
        I(f'v_mul_u32_u24 v{d}, 1280, v{vT1}')
        I(f'v_lshl_add_u32 v{d}, v{vT0}, 4, v{d}')
        if 0 < i < 4:
            I(f'v_subrev_u32 v{d}, {1024*i}, v{d}')
    I(f's_mul_i32 s{sWO}, s{sW}, {32*1280}')
    I(f's_add_u32 s{sWO}, s{sWO}, s81')

    def wq_half(h):
        L = [[f's_mul_i32 s79, s{sW}, 5120', f's_add_u32 m0, s79, {L_WB}', f's_add_u32 s79, s{sWO}, {h*320*1280}']]
        for g in range(3):
            if g == 2:
                L.append([f's_cmp_lt_u32 s{sW}, 2', f's_cselect_b32 s79, s79, {OOB}', f's_cselect_b32 m0, m0, {LDS_BYTES}'])
            for i in range(5):
                L.append([(f'buffer_load_dwordx4 v{vWO+i}, {SRD(rWQ)}, s79 offen offset:{1024*(i%4)} lds', f'wq{h}')])
                if i == 3:
                    L[-1].append('s_add_u32 m0, m0, 4096')
            if g < 2:
                L[-1] += [f's_add_u32 s79, s79, {128*1280}', f's_add_u32 m0, m0, {4*5120 - 4096}']
        return L
    srd(P, rDST, sWS, sWS + 1, HF)
    I(f's_sub_u32 s16, s{sHG}, 2')
    I(f's_lshl_b32 s16, s16, 5')
    I(f's_add_u32 s16, s16, s{sRB}')
    I(f's_mov_b32 s{sTYPE}, 0')
    srd(P, rRS, 52, 53, 0)
    srd(P, rBI, 54, 55, 0)
    I(f's_mov_b32 s{sDST}, {OOB}')
    I(f's_mov_b32 s{sST5}, 5120')
    I(f's_mov_b32 s{sROFF}, 0')
    I(f's_mov_b32 s{sB2}, 0')
    I(f's_add_u32 s{sLBN}, s{sWS}, {LAY0}')
    I(f's_addc_u32 s{sLBN+1}, s{sWS+1}, 0')
    I(f'v_mov_b32 v{vRL}, 0')
    I('s_cmp_lt_u32 s16, 54')
    I('s_cbranch_scc0 Lf_not1')
    I(f's_mov_b32 s{sTYPE}, 1')
    I(f's_mov_b32 s{rRS+2}, {640*3456}')
    I(f's_mov_b32 s{rBI+2}, 3456')
    I(f's_lshl_b32 s{sB2}, s16, 6')
    I(f's_mul_i32 s{sROFF}, s{sW}, {160*3456}')
    I(f's_add_u32 s{sROFF}, s{sROFF}, s{sB2}')
    I(f's_mul_i32 s{sDST}, s16, {TILE}')
    I(f's_add_u32 s{sA}, s{sDST}, {W1F + 40*1024}')
    I(f's_mul_i32 s17, s{sW}, 10240')
    I(f's_add_u32 s{sDST}, s{sDST}, s17')
    I(f's_add_u32 s{sDST}, s{sDST}, {W1F}')
    I(f'v_lshrrev_b32 v{vT0}, 2, v{vLANE}')
    I(f'v_mul_u32_u24 v{vT0}, 3456, v{vT0}')
    I(f'v_and_b32 v{vT1}, 3, v{vLANE}')
    I(f'v_lshl_add_u32 v{vRL}, v{vT1}, 4, v{vT0}')
    for i in range(1, 10):
        I(f'v_add_u32 v{vRL+i}, {16*3456}, v{vRL+i-1}')
    I('s_branch Lf_roled')
    P.label('Lf_not1')
    I('s_cmp_lt_u32 s16, 128')
    I('s_cbranch_scc1 Lf_t2')
    for i in range(1, 10):
        I(f'v_mov_b32 v{vRL+i}, 0')
    I('s_sub_u32 s16, s16, 128')
    I('s_cmp_lt_u32 s16, 16')
    I('s_cbranch_scc0 Lf_roled')
    I('s_lshl_b32 s16, s16, 12')
    I(f's_lshl_b32 s17, s{sW}, 10')
    I('s_add_u32 s16, s16, s17')
    I(f's_add_u32 s16, s16, {FLG}')
    vm = list(P.vm)
    I(f'buffer_store_dwordx4 {R(vRL+4,4)}, v{vL16}, {SRD(rDST)}, s16 offen')
    P.vm = vm
    I('s_branch Lf_roled')
    P.label('Lf_t2')
    I(f's_mov_b32 s{sTYPE}, 2')
    a, b, c, d = 48, 49, 50, 51
    I(f'v_bfe_u32 v{a}, v{vLANE}, 3, 2')
    I(f'v_and_b32 v{b}, 7, v{vLANE}')
    I('s_cmp_lt_u32 s16, 108')
    I('s_cbranch_scc0 Lf_wo')
    I('s_sub_u32 s16, s16, 54')
    srd(P, rRS, 50, 51, 1728 * 1280)
    I(f's_mov_b32 s{sST5}, {54*5120}')
    I(f's_mul_i32 s17, s{sW}, 108')
    I('s_add_u32 s17, s17, s16')
    I(f's_mul_i32 s{sDST}, s17, 5120')
    I(f's_add_u32 s{sDST}, s{sDST}, {W2F}')
    I('s_lshl_b32 s16, s16, 5')
    I(f'v_lshrrev_b32 v{c}, 1, v{a}')
    I(f'v_lshlrev_b32 v{c}, 4, v{c}')
    I(f'v_and_b32 v{a}, 1, v{a}')
    I(f'v_lshl_add_u32 v{c}, v{a}, 2, v{c}')
    I(f'v_add_u32 v{c}, s16, v{c}')
    I(f'v_mov_b32 v{d}, 4')
    I('s_branch Lf_t2go')
    P.label('Lf_wo')
    I('s_sub_u32 s16, s16, 108')
    srd(P, rRS, 48, 49, 640 * 1280)
    I(f's_mov_b32 s{sST5}, {20*5120}')
    I(f's_mul_i32 s17, s{sW}, 40')
    I('s_add_u32 s17, s17, s16')
    I(f's_mul_i32 s{sDST}, s17, 5120')
    I(f's_add_u32 s{sDST}, s{sDST}, {WOF}')
    I('s_mul_i32 s17, s16, 52')
    I('s_lshr_b32 s17, s17, 8')
    I('s_mul_i32 s18, s17, 5')
    I('s_sub_u32 s18, s16, s18')
    I('s_lshl_b32 s18, s18, 2')
    I('s_mul_i32 s17, s17, 160')
    I(f'v_add_u32 v{a}, s18, v{a}')
    I(f'v_cmp_le_u32 vcc, 10, v{a}')
    I(f'v_mov_b32 v{c}, 10')
    I(f'v_mov_b32 v52, 80')
    I(f'v_cndmask_b32 v{c}, 0, v{c}, vcc')
    I(f'v_cndmask_b32 v52, 0, v52, vcc')
    I(f'v_sub_u32 v{a}, v{a}, v{c}')
    I(f'v_lshrrev_b32 v{c}, 1, v{a}')
    I(f'v_mul_u32_u24 v{c}, 20, v{c}')
    I(f'v_and_b32 v{d}, 1, v{a}')
    I(f'v_lshl_add_u32 v{c}, v{d}, 2, v{c}')
    I(f'v_subrev_u32 v53, 8, v{a}')
    I(f'v_mul_u32_u24 v53, 40, v53')
    I(f'v_add_u32 v53, 16, v53')
    I(f'v_cmp_le_u32 vcc, 8, v{a}')
    I(f'v_mov_b32 v{d}, 4')
    I(f'v_mov_b32 v54, 16')
    I(f'v_cndmask_b32 v{c}, v{c}, v53, vcc')
    I(f'v_cndmask_b32 v{d}, v{d}, v54, vcc')
    I(f'v_add_u32 v{c}, v{c}, v52')
    I(f'v_add_u32 v{c}, s17, v{c}')
    P.label('Lf_t2go')
    I(f'v_cmp_le_u32 vcc, 4, v{b}')
    I(f'v_add_u32 v{c}, v{c}, v{b}')
    I(f'v_cndmask_b32 v{d}, 0, v{d}, vcc')
    I(f'v_add_u32 v{c}, v{c}, v{d}')
    I(f'v_mul_u32_u24 v{c}, 1280, v{c}')
    I(f's_mul_i32 s{sROFF}, s{sW}, 320')
    for i in range(5):
        I(f'v_add_u32 v{vT0}, {64*i}, v{vLANE}')
        I(f'v_mul_u32_u24 v{vT1}, 6554, v{vT0}')
        I(f'v_lshrrev_b32 v{vT1}, 16, v{vT1}')
        I(f'v_mul_u32_u24 v{a}, 10, v{vT1}')
        I(f'v_sub_u32 v{52+i}, v{vT0}, v{a}')
        I(f'v_lshlrev_b32 v{vT1}, 2, v{vT1}')
        I(f'ds_bpermute_b32 v{vRL+i}, v{vT1}, v{c}')
    for i in range(5):
        I(f'v_lshl_add_u32 v{vRL+i}, v{52+i}, 4, v{vRL+i}')
        I(f'v_add_u32 v{vRL+5+i}, 160, v{vRL+i}')
    P.label('Lf_roled')
    assert not P.lg
    vPI, vLO, vHI, vWR, vP16 = 35, 49, 50, 36, 48
    cq, rr_, hf = 32, 33, 34
    I(f'v_and_b32 v{cq}, 3, v{vLANE}')
    I(f'v_bfe_u32 v{vT0}, v{vLANE}, 4, 1')
    I(f'v_lshl_add_u32 v{cq}, v{vT0}, 2, v{cq}')
    I(f'v_bfe_u32 v{rr_}, v{vLANE}, 2, 2')
    I(f'v_lshrrev_b32 v{hf}, 5, v{vLANE}')
    I(f's_lshl_b32 s16, s{sW}, 3')
    I(f's_sub_u32 s16, s16, 24')
    I(f'v_lshl_add_u32 v{vT0}, v{cq}, 2, s16')
    I(f's_cmp_lt_u32 s{sHG}, 2')
    I(f's_cselect_b32 s17, 20, 0')
    I(f'v_cmp_gt_u32 vcc, s17, v{vT0}')
    I(f'v_cmp_le_u32 s[18:19], 6, v{cq}')
    I(f'v_mov_b32 v{vLO}, {L_ZERO}')
    I(f'v_mov_b32 v{vPI}, 40')
    I(f'v_lshlrev_b32 v{vT0}, 1, v{vT0}')
    I(f'v_add_u32 v{vT0}, {L_KV}, v{vT0}')
    I('s_and_b64 vcc, vcc, s[18:19]')
    I(f's_mul_i32 s16, s{sW}, 40')
    I(f's_add_u32 s16, s16, {L_WB}')
    I(f'v_cndmask_b32 v{vLO}, v{vLO}, v{vT0}, vcc')
    I(f'v_cndmask_b32 v{vPI}, 0, v{vPI}, vcc')
    I(f'v_cmp_gt_u32 vcc, 5, v{cq}')
    I(f'v_lshl_add_u32 v{vT0}, v{cq}, 3, s16')
    I(f'v_mov_b32 v{vT1}, 160')
    I(f'v_mov_b32 v{vWR}, 51200')
    I(f'v_cndmask_b32 v{vLO}, v{vLO}, v{vT0}, vcc')
    I(f'v_cndmask_b32 v{vPI}, v{vPI}, v{vT1}, vcc')
    I(f'v_cndmask_b32 v{vWR}, 0, v{vWR}, vcc')
    I(f'v_lshlrev_b32 v{vP16}, 4, v{vPI}')
    dl = [37, 38, 51, 52]
    I(f's_min_u32 s13, s{sRB}, 19')
    I(f's_mul_i32 s14, s13, 52')
    I(f's_lshr_b32 s14, s14, 8')
    I(f's_mul_i32 s16, s14, 5')
    I(f's_sub_u32 s16, s13, s16')
    I(f's_mul_i32 s14, s14, 80')
    I(f's_lshr_b32 s17, s16, 1')
    I(f's_lshl_b32 s17, s17, 5')
    I(f's_and_b32 s18, s16, 1')
    I(f's_lshl_b32 s18, s18, 3')
    I(f's_add_u32 s14, s14, s17')
    I(f's_add_u32 s14, s14, s18')
    I(f's_cmp_eq_u32 s16, 4')
    I(f's_cselect_b32 s16, 3, 2')
    I(f's_cselect_b32 s17, 4, 16')
    I(f'v_lshlrev_b32 v{vT0}, s16, v{hf}')
    I(f'v_add3_u32 v{vT0}, v{vT0}, v{rr_}, s14')
    I(f'v_mad_u32_u24 v{dl[0]}, v{vPI}, v{vT0}, v{vLO}')
    I(f'v_mad_u32_u24 v{dl[1]}, v{vPI}, s17, v{dl[0]}')
    I(f'v_mul_u32_u24 v{vT0}, 320, v{vPI}')
    I(f'v_sub_u32 v{vT0}, v{vT0}, v{vWR}')
    I(f'v_add_u32 v{dl[2]}, v{vT0}, v{dl[0]}')
    I(f'v_add_u32 v{dl[3]}, v{vT0}, v{dl[1]}')
    I(f'v_lshl_add_u32 v{vT0}, v{hf}, 3, v{rr_}')
    I(f'v_mad_u32_u24 v{vLO}, v{vPI}, v{vT0}, v{vLO}')
    I(f'v_mad_u32_u24 v{vHI}, v{vPI}, 4, v{vLO}')
    vL0 = 53
    RW = [56, 57, 58, 59, 60]
    I(f's_mul_i32 s16, s{sW}, 5120')
    I(f's_add_u32 s16, s16, {L_ROLE}')
    I(f'v_lshl_add_u32 v{vT1}, v{vQ}, 3, v{rr_}')
    I(f'v_mul_u32_u24 v{vT1}, 160, v{vT1}')
    I(f'v_and_b32 v{vT0}, 3, v{vLANE}')
    I(f'v_lshl_add_u32 v{vT1}, v{vT0}, 3, v{vT1}')
    I(f'v_add_u32 v{vL0}, s16, v{vT1}')
    I(f's_cmp_lt_u32 s{sHG}, 2')
    I(f's_cselect_b32 s16, {LDS_BYTES}, s16')
    ta, tb, tc = 72, 73, 74
    I(f'v_bfe_u32 v{ta}, v{vLANE}, 1, 1')
    I(f'v_and_b32 v{tb}, 1, v{vLANE}')
    I(f'v_lshlrev_b32 v{tb}, 4, v{tb}')
    I(f'v_add_u32 v{tb}, s16, v{tb}')
    I(f'v_bfe_u32 v{tc}, v{vLANE}, 4, 1')
    I(f'v_lshl_add_u32 v{tc}, v{tc}, 1, v{ta}')
    I(f'v_lshl_add_u32 v{tc}, v{tc}, 3, v{rr_}')
    I(f'v_mul_u32_u24 v{tc}, 160, v{tc}')
    I(f'v_lshl_add_u32 v{tc}, v{hf}, 5, v{tc}')
    I(f'v_add_u32 v{tc}, v{tc}, v{tb}')
    I(f'v_lshl_add_u32 v{ta}, v{hf}, 1, v{ta}')
    I(f'v_bfe_u32 v{vT0}, v{vLANE}, 2, 3')
    I(f'v_lshl_add_u32 v{ta}, v{ta}, 3, v{vT0}')
    I(f'v_mul_u32_u24 v{ta}, 160, v{ta}')
    I(f'v_add_u32 v{ta}, v{ta}, v{tb}')
    I(f'v_add_u32 v{tb}, s16, v{vL16}')
    I(f's_cmp_eq_u32 s{sTYPE}, 1')
    I(f's_cselect_b64 vcc, -1, 0')
    for i in range(5):
        I(f'v_add_u32 v{vT0}, {1024*i}, v{tb}')
        I(f'v_add_u32 v{vT1}, {(i%2)*640 + (i//2)*64 if i < 4 else 128}, v{tc if i < 4 else ta}')
        I(f'v_cndmask_b32 v{RW[i]}, v{vT0}, v{vT1}, vcc')
    P.run(flat(G.qkv_out_setup()))
    G.stamp(1)
    P.run(flat(xd[NX:]))
    if G.dbg.get('roleearly') == '1':
        for i in range(10):
            I(f'buffer_load_dwordx4 {R(RR+4*i,4)}, v{vRL+i}, {SRD(rRS)}, s{sROFF} offen')
        I(f'v_and_b32 v19, 31, v{vLANE}')
        I(f'v_lshlrev_b32 v19, 1, v19')
        I(f'buffer_load_ushort a124, v19, {SRD(rBI)}, s{sB2} offen')
    vm = list(P.vm)
    I(f's_cmp_lt_u32 s{sHG}, 2')
    I('s_cbranch_scc0 Lf_nokv')
    I(f's_cmp_eq_u32 s{sHG}, 0')
    I(f's_cselect_b32 s{rKV}, s44, s46')
    I(f's_cselect_b32 s{rKV+1}, s45, s47')
    I(f's_mov_b32 s{rKV+2}, 25600')
    I(f's_lshl_b32 s14, s{sW}, 10')
    for n in range(7):
        I(f's_add_u32 m0, s14, {L_KV}')
        I(f'buffer_load_dwordx4 v{vL16}, {SRD(rKV)}, s14 offen lds')
        I(f's_add_u32 s14, s14, 4096')
    P.label('Lf_nokv')
    P.vm = vm
    I(f's_lshr_b32 s13, s2, 3')
    I(f's_lshl_b32 s13, s13, 2')
    I(f's_add_u32 s13, s13, s{sW}')
    I(f's_mul_i32 s13, s13, 6400')
    I(f'v_min_u32 v{vT0}, 240, v{vL16}')
    I(f'v_add_u32 v{vT0}, 6144, v{vT0}')
    for i in range(7):
        vo = vL16 if i < 4 else (vL16B if i < 6 else vT0)
        P.I(f'buffer_load_dwordx4 {R(DUM,4)}, v{vo}, {SRD(rWQ)}, s13 offen offset:{(i % 4) * 1024 if i < 6 else 0}', nowaw=True, tag='warm')
    for ct in range(5):
        I(f'buffer_load_dwordx2 {R(RES+2*ct,2)}, v{vRO}, {SRD(rX)}, s81 offen offset:{32*ct}')
    if G.dbg.get('roleearly') == '2':
        for i in range(10):
            I(f'buffer_load_dwordx4 {R(RR+4*i,4)}, v{vRL+i}, {SRD(rRS)}, s{sROFF} offen')
        I(f'v_and_b32 v19, 31, v{vLANE}')
        I(f'v_lshlrev_b32 v19, 1, v19')
        I(f'buffer_load_ushort a124, v19, {SRD(rBI)}, s{sB2} offen')
    G.stamp(4)
    if G.dbg.get('h0early'):
        P.run(flat(wq_half(0)))
    s1, s2, SBF = 30, 31, [84, 88]
    vSB = 61
    I(f's_mov_b32 s{sONE}, 0x3f803f80')
    I(f'v_mov_b32 v{s1}, 0')
    I(f'v_mov_b32 v{s2}, 0')
    I(f's_mul_i32 s13, s{sW}, 20480')
    I(f'v_xor_b32 v{vT0}, v{vQ}, v{vT16}')
    I(f'v_lshlrev_b32 v{vT0}, 4, v{vT0}')
    I(f'v_mul_u32_u24 v{vSB}, 1280, v{vT16}')
    I(f'v_add3_u32 v{vSB}, v{vSB}, v{vT0}, s13')
    SA = [vSB, 62, 63, 39]
    for c in range(1, 4):
        I(f'v_xor_b32 v{SA[c]}, {64*c}, v{vSB}')
    P.wait_tag('x')
    G.stamp(2)
    SBF = [76, 80, 84, 88]
    rd = lambda j: f'ds_read_b128 {R(SBF[j % 4],4)}, v{SA[j % 4]} offset:{(j // 4) * 256}'
    for j in range(3):
        I(rd(j))
    for j in range(20):
        if j + 3 < 20:
            I(rd(j + 3))
        for r in range(4):
            t = SBF[j % 4] + r
            I(f'v_dot2_f32_bf16 v{s1}, v{t}, s{sONE}, v{s1}')
            I(f'v_dot2_f32_bf16 v{s2}, v{t}, v{t}, v{s2}')
    P.run(G.stats_final(s1, s2, 84))
    I(f'v_mov_b32 v{vT0}, 0')
    I(f'v_mov_b32 v{vT1}, 0')
    I(f'v_mov_b32 v72, {L_ZERO}')
    G.stamp(3)
    if not G.dbg.get('h0early'):
        P.run(flat(wq_half(0)))
    rloads = [[f'buffer_load_dwordx4 {R(RR+4*i,4)}, v{RLH+i}, {SRD(rRS)}, s{sROFF} offen'] for i in range(10)]
    if G.dbg.get('roleearly'):
        rloads = []
    else:
        for i in range(10):
            I(f'v_mov_b32 v{RLH+i}, v{vRL+i}')
        I(f'v_and_b32 v19, 31, v{vLANE}')
        I(f'v_lshlrev_b32 v19, 1, v19')
        I(f'buffer_load_ushort a124, v19, {SRD(rBI)}, s{sB2} offen')
    G.xs_setup(17, 18)
    srd_off(P, rX, sWS, XS, 0x300000)
    I(f'buffer_store_dwordx4 {R(RES,4)}, v{vL16}, {SRD(rX)}, s{sXO} offen')
    I(f'buffer_store_dwordx4 {R(RES+4,4)}, v{vL16}, {SRD(rX)}, s{sXO} offen offset:1024')
    I(f'buffer_store_dwordx2 {R(RES+8,2)}, v17, {SRD(rX)}, s{sXO} offen offset:2048')
    XB = [84 + i for i in range(8)]
    I(f'v_and_b32 v{vT0}, 31, v{vLANE}')
    I(f'v_xor_b32 v{vT1}, v{hf}, v{vT16}')
    I(f'v_lshlrev_b32 v{vT1}, 4, v{vT1}')
    I(f'v_mul_u32_u24 v{vT0}, 1280, v{vT0}')
    I(f'v_add_u32 v{XB[0]}, v{vT0}, v{vT1}')
    for i in range(1, 8):
        I(f'v_xor_b32 v{XB[i]}, {32*i}, v{XB[0]}')
    I(f'v_mov_b32 v{vT0}, 0')
    I(f'v_mov_b32 v{vT1}, 0')
    G.stamp(13)
    P.wait_tag('wq0')
    I(f'ds_write_b64 v72, {R(vT0,2)}')
    P.wait(lg=0)
    I('s_barrier')
    G.stamp(14)
    cs = [54, 55]
    I(f'v_mov_b32 v{cs[0]}, 0')
    I(f'v_mov_b32 v{cs[1]}, 0')
    ring = [72 + i for i in range(12)]
    st = {'lo': vLO, 'hi': vHI, 'n': 0}

    def trread(ks):
        L = []
        for h, key in enumerate(('lo', 'hi')):
            x = st[key]
            n = ring[st['n'] % len(ring)]
            st['n'] += 1
            L.append(f'ds_read_b64_tr_b16 {R(W[ks]+2*h,2)}, v{x}')
            if ks == 19:
                L.append(f'v_sub_u32 v{vLO + h}, v{x}, v{vWR}')
                L.append(f'v_add_u32 v{vLO + h}, v{vP16}, v{vLO + h}')
                n = vLO + h
            elif ks < 39:
                L.append(f'v_add_u32 v{n}, v{vP16}, v{x}')
            st[key] = n
        return L
    dots = lambda ks: [f'v_dot2_f32_bf16 v{cs[r%2]}, v{W[ks]+r}, s{sONE}, v{cs[r%2]}' for r in range(4)]
    I(f'ds_read_b64_tr_b16 {R(DF[0],2)}, v{dl[0]}')
    I(f'ds_read_b64_tr_b16 {R(DF[0]+2,2)}, v{dl[1]}')
    LAG = 5
    for ks in range(20 + LAG):
        if ks < 20:
            P.run(trread(ks))
        if ks >= LAG:
            P.run(dots(ks - LAG))
    xf = lambda dst, ks, tt: f'ds_read_b128 {R(dst,4)}, v{XB[ks % 8]} offset:{tt*40960 + (ks // 8)*256}'
    units = [(ks, tt) for ks in range(40) for tt in range(2)]
    BB = [256 + 96 + 4 * j for j in range(6)]
    G.stamp(5)
    P.wait(lg=0)
    I('s_barrier')
    G.stamp(6)
    nb = len(BB)
    AH = nb - 1
    for u in range(AH):
        I(xf(BB[u % nb], *units[u]))
    P.run(G.stats_fetch(BX, RS, vT0))
    G.stamp(11)
    h1 = wq_half(1)
    UB = int(G.dbg.get('ub', 30))
    side = h1 + (rloads if G.dbg.get('rl0') else [])
    role = []
    st_ = lambda k: f'buffer_store_dwordx4 {R(RF+4*k,4)}, v{vL16B if k % 5 == 4 else vL16}, {SRD(rDST)}, s{sDST} offen offset:{1024*(k % 5 % 4)}'
    for k in range(10):
        if k % 5 == 0:
            role += [[f'ds_write_b128 v{RW[i]}, {R(RR+4*(k+i),4)}'] for i in range(5)]
        role.append([f'ds_read_b64_tr_b16 {R(RF+4*k,2)}, v{vL0} offset:{32*(k%5)}',
                     f'ds_read_b64_tr_b16 {R(RF+4*k+2,2)}, v{vL0} offset:{32*(k%5)+640}'])
        if k >= 2:
            role[-1] += [st_(k - 2)] + ([f's_add_u32 s{sDST}, s{sDST}, s{sST5}'] if k == 6 else [])
    role += [[st_(8)], [st_(9)]]
    X4 = W[40]
    wqf = [[f's_lshl_b32 s{sWO}, s{sHG}, 2', f's_add_u32 s{sWO}, s{sWO}, s{sW}'],
           [f's_mul_i32 s{sWO}, s{sWO}, {TILE}', f's_lshl_b32 s78, s{sRB}, 10'],
           [f's_add_u32 s78, s78, s{sWO}', f's_cmp_lt_u32 s{sRB}, 20', f's_cselect_b32 s78, s78, {OOB}'],
           [f'buffer_store_dwordx4 {R(DF[0],4)}, v{vL16}, {SRD(rDST)}, s78 offen', f's_add_u32 s78, s78, 20480']]
    for u, (ks, tt) in enumerate(units):
        if u == UB:
            assert not side
            G.stamp(8)
            P.wait_tag('wq1')
            I('s_barrier')
            G.stamp(9)
            P.run([f'ds_read_b64_tr_b16 {R(DF[1],2)}, v{dl[2]}', f'ds_read_b64_tr_b16 {R(DF[1]+2,2)}, v{dl[3]}'])
            side = (rloads if not G.dbg.get('rl0') else []) + wqf
        I(MF32(ACC[tt], W[ks], BB[u % nb], None if ks == 0 else ACC[tt]))
        if u + AH < len(units):
            I(xf(BB[(u + AH) % nb], *units[u + AH]))
        if u >= UB and tt == 0 and ks + 20 - UB // 2 < 40:
            P.run(trread(ks + 20 - UB // 2))
        if u >= int(G.dbg.get('r0', 100)) and role:
            P.run(role.pop(0))
        if side:
            P.run(side.pop(0))
            if side and u < 6:
                P.run(side.pop(0))
        if u + 1 < len(units):
            P.need(BB[(u + 1) % nb], 4)
            P.need(W[units[u + 1][0]], 4)
    P.run(flat(side))
    I(f'buffer_store_dwordx4 {R(DF[1],4)}, v{vL16}, {SRD(rDST)}, s78 offen')
    G.stamp(7)
    for ks in range(20, 40):
        P.run(dots(ks))
    I(f'v_add_f32 v{cs[0]}, v{cs[0]}, v{cs[1]}')
    I(f'v_mov_b32 v{cs[1]}, v{cs[0]}')
    I(f'v_permlane32_swap_b32 v{cs[0]}, v{cs[1]}')
    I(f'v_add_f32 v{cs[0]}, v{cs[0]}, v{cs[1]}')
    I(f'v_cvt_pk_bf16_f32 v{X4}, v{cs[0]}, v{cs[0]}')
    I(f'v_and_b32 v{cs[1]}, 0xffff0000, v{X4}')
    I(f'v_sub_f32 v{cs[1]}, v{cs[0]}, v{cs[1]}')
    I(f'v_cvt_pk_bf16_f32 v{X4+1}, v{cs[1]}, 0')
    I(f'v_cmp_gt_u32 vcc, 32, v{vLANE}')
    I(f'v_mov_b32 v{X4+2}, 0')
    I(f'v_mov_b32 v{X4+3}, 0')
    I(f'v_cndmask_b32 v{X4}, 0, v{X4}, vcc')
    I(f'v_cndmask_b32 v{X4+1}, 0, v{X4+1}, vcc')
    I(f's_add_u32 s78, s{sWO}, 40960')
    I(f's_cmp_eq_u32 s{sRB}, 20')
    I(f's_cselect_b32 s78, s78, {OOB}')
    for tt in range(2):
        I(MF32(ACC[tt], X4, BX[tt], ACC[tt]))
    I(f'buffer_store_dwordx4 {R(X4,4)}, v{vL16}, {SRD(rDST)}, s78 offen')
    I('s_barrier')
    G.stamp(15)
    G.qkv_epilogue(RS, 96, 112)
    G.stamp(12)
    P.run(flat(role))
    I(f's_cmp_eq_u32 s{sTYPE}, 1')
    I('s_cbranch_scc0 Lf_fin')
    vm, lg = list(P.vm), list(P.lg)
    c0, c1, t0 = 72, 73, 74
    I(f'v_mov_b32 v{c0}, 0')
    for r in range(40):
        I(f'v_accvgpr_read_b32 v{t0 + r % 2}, {R(RF+r)}')
        I(f'v_dot2_f32_bf16 v{c0}, v{t0 + r % 2}, s{sONE}, v{c0}')
    I(f'v_mov_b32 v{c1}, v{c0}')
    I(f'v_permlane32_swap_b32 v{c0}, v{c1}')
    I(f'v_add_f32 v{c0}, v{c0}, v{c1}')
    I(f's_lshl_b32 s13, s{sW}, 7')
    I(f's_add_u32 s13, s13, {L_CS}')
    I(f'v_and_b32 v{t0}, 31, v{vLANE}')
    I(f'v_lshlrev_b32 v{t0}, 2, v{t0}')
    I(f'v_add_u32 v{c1}, s13, v{t0}')
    I(f'v_add_u32 v{t0}, {L_CS}, v{t0}')
    I(f'ds_write_b32 v{c1}, v{c0}')
    P.wait(lg=0)
    I('s_barrier')
    for i in range(4):
        I(f'ds_read_b32 v{76+i}, v{t0} offset:{128*i}')
    I('v_add_f32 v76, v76, v77')
    I('v_add_f32 v78, v78, v79')
    I('v_add_f32 v76, v76, v78')
    I('v_cvt_pk_bf16_f32 v80, v76, v76')
    I('v_and_b32 v77, 0xffff0000, v80')
    I('v_sub_f32 v77, v76, v77')
    I('v_cvt_pk_bf16_f32 v77, v77, 0')
    I('v_accvgpr_read_b32 v82, a124')
    I('v_lshl_or_b32 v81, v82, 16, v77')
    I('v_mov_b32 v83, 0')
    I(f'v_cmp_gt_u32 vcc, 32, v{vLANE}')
    I(f's_cmp_eq_u32 s{sW}, 0')
    I(f's_cselect_b32 s{sA}, s{sA}, {OOB}')
    for r in (80, 81, 82):
        I(f'v_cndmask_b32 v{r}, 0, v{r}, vcc')
    I(f'buffer_store_dwordx4 v[80:83], v{vL16}, {SRD(rDST)}, s{sA} offen')
    P.label('Lf_fin')
    G.stamp(16)
    if G.dbg.get('htf'):
        G.h_stream(rX, RF)
    I('s_endpgm')
    P.forget()
```

```python
from asmlib import *
from layout import *
from common import *
import math, struct


class Gen:
    def __init__(self, P, dbg=None):
        self.P = P
        self.dbg = dbg or {}
        self.npoll = 0

    def signal(self, stage):
        P = self.P
        P.wait_tag('pub')
        P.I(f's_cmp_lg_u32 s{sFAST}, 0')
        P.I(f's_cbranch_scc1 Lsigf{stage}')
        vm = list(P.vm)
        P.I('buffer_wbl2 sc1')
        P.I('s_waitcnt vmcnt(0)')
        P.I(f'buffer_store_dword v{vL16B}, v{vSIG}, {SRD(rFL)}, s{sFLO} offen offset:{stage*128} sc1')
        P.I(f's_branch Lsigd{stage}')
        P.label(f'Lsigf{stage}')
        P.vm = vm
        P.I(f'buffer_store_dword v{vL16B}, v{vSIG}, {SRD(rFL)}, s{sFLO} offen offset:{stage*128}')
        P.label(f'Lsigd{stage}')

    def poll(self, stage, smask):
        P = self.P
        n = self.npoll
        self.npoll += 1
        P.I(f's_mov_b32 s{sP0}, 0x400000')
        l4 = self.l4(8)
        P.label(f'Lpoll{n}')
        P.I(f'buffer_load_dword v{vT0}, v{l4}, {SRD(rFL)}, s{sFLO} offen offset:{stage*128} sc1')
        P.I(f's_sub_u32 s{sP0}, s{sP0}, 1')
        P.I(f's_cbranch_scc1 Lpolled{n}')
        P.I('s_waitcnt vmcnt(0)')
        P.I(f'v_cmp_ne_u32 vcc, 0, v{vT0}')
        P.I(f's_and_b32 s{sP1}, vcc_lo, s{smask}')
        P.I(f's_cmp_eq_u32 s{sP1}, s{smask}')
        P.I(f's_cbranch_scc0 Lpoll{n}')
        P.label(f'Lpolled{n}')
        P.I(f's_cmp_lg_u32 s{sFAST}, 0')
        P.I(f's_cbranch_scc1 Lacq{n}')
        P.I('buffer_inv sc1')
        P.I('s_waitcnt vmcnt(0)')
        P.label(f'Lacq{n}')
        P.forget()

    def stamp(self, k):
        if not self.dbg.get('stamps'):
            return
        P = self.P
        lg = list(P.lg)
        P.I('s_memtime s[100:101]')
        P.I('s_memrealtime s[98:99]')
        P.I('s_waitcnt lgkmcnt(0)')
        P.I(f'v_writelane_b32 v{vL4}, s100, {k}')
        P.I(f'v_writelane_b32 v{vL4}, s98, {32 + k}')
        if k == 16:
            P.I(f's_lshl_b32 s13, s{sMODE}, 20')
            P.I(f's_add_u32 s13, s13, 0xB00000')
            srd_off(P, 96, sWS, 's13', 0x100000)
            P.I(f's_lshl_b32 s13, s{sBLK}, 8')
            P.I(f'v_lshlrev_b32 v{vT0}, 2, v{vLANE}')
            P.I(f'buffer_store_dword v{vL4}, v{vT0}, s[96:99], s13 offen')

    def l4(self, tmp):
        if not self.dbg.get('stamps'):
            return vL4
        self.P.I(f'v_lshrrev_b32 v{tmp}, 5, v{vLANE}')
        self.P.I(f'v_lshlrev_b32 v{tmp}, 28, v{tmp}')
        self.P.I(f'v_or_b32 v{tmp}, v{tmp}, v{vLANE}')
        self.P.I(f'v_lshlrev_b32 v{tmp}, 2, v{tmp}')
        return tmp

    def ids(self):
        I = self.P.I
        I(f'v_lshrrev_b32 v{vT0}, 6, v0')
        I(f'v_and_b32 v{vLANE}, 63, v0')
        I(f'v_readfirstlane_b32 s{sW}, v{vT0}')
        I(f'v_lshlrev_b32 v{vL16}, 4, v{vLANE}')
        I(f'v_add_u32 v{vL16B}, 4096, v{vL16}')
        I(f's_and_b32 s13, s2, 7')
        I(f's_lshr_b32 s14, s2, 6')
        I(f's_lshl_b32 s13, s13, 2')
        I(f's_add_u32 s{sRB}, s13, s14')
        I(f's_lshr_b32 s{sHG}, s2, 3')
        I(f's_and_b32 s{sHG}, s{sHG}, 7')
        I(f's_lshl_b32 s{sBLK}, s{sRB}, 2')
        I(f's_add_u32 s{sBLK}, s{sBLK}, s{sW}')
        I(f's_lshl_b32 s{sBLK}, s{sBLK}, 3')
        I(f's_add_u32 s{sBLK}, s{sBLK}, s{sHG}')

    def prologue(self):
        P = self.P
        I = P.I
        for name, mode in (('layer1_kernel', 1), ('layer2_kernel', 2)):
            P.raw('.p2align 8')
            P.raw(f'{name}:')
            I(f's_mov_b32 s{sMODE}, {mode}')
            if mode != 2:
                I('s_branch Lentry')
        P.label('Lentry')
        I('s_cmp_ge_u32 s2, 256')
        I('s_cbranch_scc1 Lend')
        I(f's_load_dwordx2 s[{sWS}:{sWS+1}], s[0:1], 88')
        I(f's_load_dwordx2 s[{sOUT}:{sOUT+1}], s[0:1], 72')
        self.ids()
        I(f's_mul_i32 s14, s{sMODE}, {LSTR}')
        I(f's_add_u32 s14, s14, {LAY0 - LSTR}')
        P.wait(lg=0)
        I(f's_add_u32 s{sLB}, s{sWS}, s14')
        I(f's_addc_u32 s{sLB+1}, s{sWS+1}, 0')
        self.stamp(0)

    WQ_EARLY = 23

    def late_setup(self):
        P = self.P
        I = P.I
        if not self.dbg.get('stamps'):
            I(f'v_lshrrev_b32 v{vT1}, 5, v{vLANE}')
            I(f'v_lshlrev_b32 v{vL4}, 2, v{vLANE}')
            I(f'v_lshl_add_u32 v{vL4}, v{vT1}, 30, v{vL4}')
        I(f'v_mov_b32 v{vIDX}, 0xdddddddd')
        I(f's_mov_b32 s{sFB}, 0')
        I(f's_lshl_b32 s13, s{sW}, 3')
        I(f's_lshl_b32 s{sMASK8}, 0xff, s13')
        I(f's_lshl_b32 s{sMASK1}, 0x11111111, s{sW}')
        I(f's_lshl_b32 s13, s{sHG}, 2')
        I(f's_add_u32 s13, s13, s{sW}')
        I(f's_lshl_b32 s13, s13, 2')
        I(f'v_mov_b32 v{vSIG}, {OOB}')
        I(f'v_mov_b32 v{vT1}, s13')
        I(f'v_cmp_eq_u32 vcc, 0, v{vLANE}')
        I(f'v_cndmask_b32 v{vSIG}, v{vSIG}, v{vT1}, vcc')
        I(f's_lshr_b32 s15, s{sMODE}, 1')
        I(f's_lshl_b32 s15, s15, 5')
        I(f's_add_u32 s15, s15, s{sRB}')
        I(f's_lshl_b32 s{sFLO}, s15, 10')
        srd_off(P, rFL, sWS, FLG, 65536)

    def wq_warm(self, lo, hi, dst):
        P = self.P
        if not self.dbg.get('wqwarm'):
            return
        P.I(f's_cmp_eq_u32 s{sMODE}, 2')
        P.I(f's_cbranch_scc1 Lwqw{lo}')
        if lo == 0:
            self.wq_srd()
            P.I(f's_and_b32 s13, s{sRB}, 3')
            P.I(f's_lshl_b32 s13, s13, 10')
            P.I(f's_add_u32 s{rF}, s{rF}, s13')
            P.I(f's_addc_u32 s{rF+1}, s{rF+1}, 0')
            P.I(f's_sub_u32 s{rF+2}, s{rF+2}, s13')
        for i in range(lo, hi):
            P.I(fragload(dst, rF, 4 * i), nowaw=True)
        P.label(f'Lwqw{lo}')

    def wq_srd(self):
        P = self.P
        P.I(f's_lshl_b32 s13, s{sHG}, 2')
        P.I(f's_add_u32 s13, s13, s{sW}')
        P.I(f's_mul_i32 s13, s13, {TILE}')
        srd_off(P, rF, sWS, 's13', TILE)

    def kv_loads(self, i):
        e, kb, vb = i % 2, K16[i % 3], V_[i % 3]
        L = []
        if e == 0:
            L.append(f'buffer_load_dwordx4 {R(vb,4)}, v{vL16}, {SRD(rB)}, s{sKV} offen offset:3072')
            L.append(f'buffer_load_dwordx4 {R(vb+4,4)}, v{vL16B}, {SRD(rB)}, s{sKV} offen')
            L.append(f'buffer_load_dwordx4 {R(K8P[(i//2)%2],4)}, v{vL16}, {SRD(rB)}, s{sKV} offen offset:2048')
        else:
            L.append(f'buffer_load_dwordx4 {R(vb,4)}, v{vL16B}, {SRD(rB)}, s{sKV} offen offset:1024')
            L.append(f'buffer_load_dwordx4 {R(vb+4,4)}, v{vL16B}, {SRD(rB)}, s{sKV} offen offset:2048')
        L.append(f'buffer_load_dwordx4 {R(kb,4)}, v{vL16}, {SRD(rB)}, s{sKV} offen offset:{1024*e}')
        return L

    def attention(self):
        P = self.P
        I = P.I
        I(f's_lshl_b32 s13, s{sRB}, 3')
        I(f's_add_u32 s13, s13, s{sHG}')
        I(f's_mul_i32 s13, s13, 12288')
        I(f's_add_u32 s13, s13, {QF}')
        srd_off(P, rA, sLB, 's13', 12288)
        srd_off(P, rB, sLB, KVF, 32 * 7168)
        I(f's_and_b32 s13, s{sW}, 1')
        I(f's_mul_i32 s{sKV}, s13, {16*7168}')
        for t in self.kv_loads(0)[::-1]:
            I(t)
        I(f's_mul_i32 s14, s{sW}, 3072')
        I(f's_xor_b32 s15, s{sW}, 1')
        I(f's_mul_i32 s15, s15, 3072')
        I(f'v_lshlrev_b32 v{vT0}, 3, v{vLANE}')
        for q in range(4):
            so = 's15' if q < 2 else 's14'
            I(f'buffer_load_dwordx4 {R(Q16[q],4)}, v{vL16}, {SRD(rA)}, {so} offen offset:{(q%2)*1536}')
            I(f'buffer_load_dwordx2 {R(Q8[q],2)}, v{vT0}, {SRD(rA)}, {so} offen offset:{(q%2)*1536+1024}')
        for t in self.kv_loads(1):
            I(t)
        I(f's_lshr_b32 s13, s2, 3')
        I(f's_mul_i32 s13, s13, 7168')
        I(f's_mul_i32 s14, s{sW}, 1792')
        I(f's_add_u32 s13, s13, s14')
        I(f'buffer_load_dwordx4 {R(S_[2],4)}, v{vL16}, {SRD(rB)}, s13 offen')
        I(f'buffer_load_dwordx4 {R(S_[2]+4,4)}, v{vL16}, {SRD(rB)}, s13 offen offset:1024')
        I(f's_mul_i32 s16, s{sRB}, 221184')
        I(f's_add_u32 s16, s16, {HF}')
        srd_off(P, rA, sWS, 's16', 221184)
        I(f's_lshl_b32 s18, s{sHG}, 2')
        I(f's_add_u32 s18, s18, s{sW}')
        I(f's_mul_i32 s{sT+8}, s18, 6912')
        I(f's_add_u32 s{rG}, s{rA}, s{sT+8}')
        I(f's_addc_u32 s{rG+1}, s{rA+1}, 0')
        self.late_setup()
        I(f's_getreg_b32 s{sFAST}, hwreg(HW_REG_XCC_ID, 0, 4)')
        I(f's_add_u32 s{sFAST}, s{sFAST}, 1')
        I(f'v_mov_b32 v{vT1}, s{sFAST}')
        I(f'buffer_store_dword v{vT1}, v{vSIG}, {SRD(rFL)}, s{sFLO} offen offset:512 sc1')
        for j in range(1, 10):
            I(f's_mov_b32 s{sK8+j}, {8192*j}')
        I(f's_add_u32 s{sLBN}, s{sLB}, {LSTR}')
        I(f's_addc_u32 s{sLBN+1}, s{sLB+1}, 0')
        I(f's_mov_b32 s{sLN2}, 0x3f317218')
        I(f's_mov_b32 s{sLN2+1}, 0x3f317218')
        I(f's_mul_i32 s13, s{sHG}, 7')
        I(f's_lshl_b32 s14, s{sW}, 1')
        I(f's_add_u32 s13, s13, s14')
        I(f's_cmp_lt_u32 s13, 54')
        I(f's_cselect_b32 s{sT}, {TILE}, 0')
        I(f's_add_u32 s15, s13, 1')
        I(f's_cmp_lt_u32 s15, 54')
        I(f's_cselect_b32 s{sT+1}, {TILE}, 0')
        I(f's_cmp_lt_u32 s{sW}, 3')
        I(f's_cselect_b32 s{sT+1}, s{sT+1}, 0')
        I(f's_mov_b32 s{sT+2}, s13')
        I(f's_mul_i32 s14, s13, {TILE}')
        I(f's_add_u32 s14, s14, {W1F}')
        srd_off(P, rC, sWS, 's14', f's{sT}')
        I(f's_add_u32 s14, s14, {TILE}')
        srd_off(P, rD, sWS, 's14', f's{sT+1}')
        I(f's_mul_i32 s14, s{sHG}, 102400')
        I(f's_add_u32 s14, s14, {WOF}')
        srd_off(P, rE, sWS, 's14', 102400)
        P.label('Lattn_main')
        I(f's_mul_i32 m0, s{sW}, 25600')
        for r in range(64):
            I(f'v_mov_b32 v{O_[0]+r}, 0')
        pre = []
        for k in range(41):
            pre.append([fragload(W1A[k], rC, k)])
        for k in range(25):
            g = []
            if k and k % 4 == 0:
                g.append('s_add_u32 m0, m0, 4096')
            g.append((f'buffer_load_dwordx4 v{vL16}, {SRD(rE)}, m0 offen offset:{(k%4)*1024} lds', 'wo'))
            pre.append(g)
        for k in range(39):
            pre.append([fragload(W1B[k], rD, k)])
        if self.dbg.get('w2warm'):
            for i in range(18):
                pre.append([(fragload(W1B[39], rF, 4 * i), 'touch')])
        pre.append([(fragload(W1B[39], rD, 39), 'touch')])
        NW = 128
        extra = [[] for _ in range(NW)]
        for i in range(30):
            g = []
            if i % 2 == 0:
                g.append(f's_add_u32 s{sKV}, s{sKV}, 7168')
            if not self.dbg.get('nokv'):
                extra[4 * i + 1] += g + self.kv_loads(i + 2)
        if self.dbg.get('nopre'):
            pre = []
        slots = [n for n in range(1, 118) if n % 4 in (1, 2)] + [118, 119, 120, 122, 123]
        if self.dbg.get('slots03'):
            slots = [n for n in range(2, 124) if n % 4 in (0, 3)]
        npair = (len(pre) + 1) // 2
        assert npair <= len(slots)
        for k, g in enumerate(pre):
            extra[slots[(k // 2) * len(slots) // npair]] += g

        def M1(n):
            return MF32(S_[n % 3], K16[(n // 4) % 3], Q16[n % 4])

        def M2(n):
            i = n // 4
            return MF8(S_[n % 3], K8P[(i // 2) % 2] + 2 * (i % 2), Q8[n % 4])

        def P1(n):
            return SMF(O_[n % 4], V_[(n // 4) % 3], S_[n % 3])

        def P2(n):
            return SMF(O_[n % 4], V_[(n // 4) % 3] + 4, S_[n % 3] + 8)

        sO1, sO2, sXW, sXR = sT + 3, sT + 6, sT + 7, sT + 9
        free = [f's_mul_i32 s{sXW}, s{sW}, 6144', f's_add_u32 s{sXW}, s{sXW}, {L_RED}',
                f's_xor_b32 s{sXR}, s{sW}, 1', f's_mul_i32 s{sXR}, s{sXR}, 6144', f's_add_u32 s{sXR}, s{sXR}, {L_RED}',
                f's_and_b32 s13, s{sHG}, 1', f's_mul_i32 s13, s13, 10', f's_lshl_b32 s14, s{sW}, 1',
                f's_add_u32 s14, s14, s13', f's_lshr_b32 s15, s{sW}, 1', f's_add_u32 s15, s15, s13',
                f's_add_u32 s15, s15, 8', f's_lshr_b32 s16, s{sHG}, 1', f's_mul_i32 s16, s16, {5*4096}',
                f's_lshr_b32 s17, s14, 2', f's_lshl_b32 s17, s17, 12', f's_and_b32 s14, s14, 3',
                f's_lshl_b32 s14, s14, 8', f's_add_u32 s14, s14, s17', f's_add_u32 s{sO1}, s14, s16',
                f's_lshr_b32 s17, s15, 2', f's_lshl_b32 s17, s17, 12', f's_and_b32 s15, s15, 3',
                f's_lshl_b32 s15, s15, 8', f's_add_u32 s15, s15, s17', f's_add_u32 s15, s15, s16',
                f's_and_b32 s17, s{sW}, 1', f's_lshl_b32 s17, s17, 3', f's_add_u32 s{sO2}, s15, s17',
                [f's_add_u32 s{rH}, s{sWS}, {XS}', f's_addc_u32 s{rH+1}, s{sWS+1}, 0'],
                f's_mov_b32 s{rH+2}, 0x300000', f's_mov_b32 s{rH+3}, 0x20000',
                f's_mul_i32 s{sRUN}, s{sW}, {5*4096}']
        if self.dbg.get('w2warm'):
            free += [f's_mul_i32 s16, s{sHG}, 276480', f's_mul_i32 s17, s{sW}, 71680', f's_and_b32 s18, s{sRB}, 3',
                     f's_lshl_b32 s18, s18, 10', f's_add_u32 s17, s17, s18', f's_add_u32 s16, s16, s17', f's_add_u32 s16, s16, {W2F}',
                     [f's_add_u32 s{rF}, s{sWS}, s16', f's_addc_u32 s{rF+1}, s{sWS+1}, 0'],
                     f's_sub_u32 s{rF+2}, 276480, s17', f's_mov_b32 s{rF+3}, 0x20000']
        extra[118] += self.touch_h(rA, sT + 8)
        nst = int(self.dbg.get('nst', 108))
        stouch = [f's_load_dword s{rG+2}, s[{rG}:{rG+1}], {(6912 // nst) * i}' for i in range(nst)]
        vW, vRd, vID = vT0, vT1, K8P[0]
        self.stamp(1)
        I(M1(0))
        I(M2(0))
        for n in range(NW):
            s = S_[n % 3]
            E = [f'v_exp_f32 v{s+r}, v{s+r}' for r in range(16)]
            seq = []
            if n + 1 < NW:
                seq.append(M1(n + 1))
            if n >= 8 and free:
                f = free.pop(0)
                if isinstance(f, list):
                    extra[n] = f + extra[n]
                else:
                    seq.append(f)
            seq += E[0:4]
            if n + 1 < NW:
                seq.append(M2(n + 1))
            seq += E[4:8]
            if n > 0:
                seq.append(P2(n - 1))
            seq += extra[n]
            if n == 121:
                seq.append(lambda P: P.I(f'buffer_load_dword v{vID}, v{self.l4(vID + 1)}, {SRD(rFL)}, s{sFLO} offen offset:512 sc1'))
            if n == 127:
                seq += [f'ds_write_b128 v{vW}, {R(O_[1] + 4*j, 4)} offset:{1024*(3+j)}' for j in range(3)]
            seq += E[8:12]
            seq.append(P1(n))
            if stouch:
                seq.append((stouch.pop(0), 'touch'))
            if n % 4 == 2 and n + 2 < NW:
                seq.append(NEED(K16[((n + 2) // 4) % 3]))
            if n == 125:
                seq += [f'v_add_u32 v{vW}, s{sXW}, v{vL16}', f'v_add_u32 v{vRd}, s{sXR}, v{vL16}']
            if n == 126:
                seq += [f'ds_write_b128 v{vW}, {R(O_[0] + 4*j, 4)} offset:{1024*j}' for j in range(3)]
            seq += E[12:16]
            P.run(seq)
        assert not free and not stouch, len(stouch)
        P.wait(lg=0)
        I('s_barrier')
        RX = O_[0]
        for j in range(6):
            I(f'ds_read_b128 {R(RX + 4*j, 4)}, v{vRd} offset:{1024*j}')
        I(P2(NW - 1))
        self.stamp(2)
        vO, vO2, vHF = S_[0], S_[0] + 1, S_[0] + 2
        I(f'v_lshrrev_b32 v{vHF}, 5, v{vLANE}')
        I(f'v_and_b32 v{vO}, 15, v{vLANE}')
        I(f'v_lshlrev_b32 v{vO}, 4, v{vO}')
        I(f'v_bfe_u32 v{vT0}, v{vLANE}, 4, 1')
        I(f'v_lshl_add_u32 v{vO2}, v{vT0}, 10, v{vO}')
        I(f'v_lshl_add_u32 v{vO}, v{vHF}, 8, v{vO2}')
        I(f'v_lshl_add_u32 v{vO2}, v{vHF}, 30, v{vO2}')
        I(f'v_cmp_eq_u32 vcc, s{sFAST}, v{vID}')
        I(f's_mov_b32 s16, 0x21800000')
        I(f's_mov_b32 s17, 0x5f800000')
        I(f's_cmp_eq_u32 vcc_lo, -1')
        I(f's_cselect_b32 s72, 1, 0')
        if self.dbg.get('forceslow'):
            I(f's_mov_b32 s72, 0')
        OWN = [O_[2], O_[3]]
        vl = [S_[0] + 4, S_[0] + 6]
        PK = S_[0] + 8
        for t in range(2):
            o = OWN[t]
            for j in (4, 5, 0, 1, 2, 3):
                I(f'v_pk_add_f32 {R(o + 2*j, 2)}, {R(o + 2*j, 2)}, {R(RX + 12*t + 2*j, 2)}')
            I(f'v_mov_b32 v{vl[t]}, v{o + 8}')
            I(f'v_mov_b32 v{vl[t]+1}, v{o + 8}')
            I(f'v_permlane32_swap_b32 v{vl[t]}, v{vl[t]+1}')
            I(f'v_rcp_f32 v{vl[t]}, v{vl[t]+1}')
        I(f'v_cmp_le_f32 vcc, s16, v{vl[0]+1}')
        I(f'v_cmp_ge_f32 s[18:19], s17, v{vl[0]+1}')
        I(f's_and_b64 s[{sT+4}:{sT+5}], vcc, s[18:19]')
        I(f'v_cmp_le_f32 vcc, s16, v{vl[1]+1}')
        I(f'v_cmp_ge_f32 s[18:19], s17, v{vl[1]+1}')
        I(f's_and_b64 s[{sT+4}:{sT+5}], s[{sT+4}:{sT+5}], vcc')
        I(f's_and_b64 s[{sT+4}:{sT+5}], s[{sT+4}:{sT+5}], s[18:19]')
        I(f's_cmp_eq_u64 s[{sT+4}:{sT+5}], -1')
        I(f's_cselect_b32 s16, 0, 1')
        if self.dbg.get('forcefb'):
            I('s_mov_b32 s16, 1')
        I(f's_lshl_b32 s17, s{sW}, 2')
        I(f's_add_u32 s17, s17, {L_CK}')
        I(f'v_mov_b32 v{vT0}, s16')
        I(f'v_mov_b32 v{vT1}, s17')
        I(f'ds_write_b32 v{vT1}, v{vT0}')
        for t in range(2):
            o = OWN[t]
            I(f'v_mov_b32 v{vl[t]+1}, v{vl[t]}')
            for j in range(6):
                I(f'v_pk_mul_f32 {R(o + 2*j, 2)}, {R(o + 2*j, 2)}, {R(vl[t], 2)}')
            for d in range(6):
                I(f'v_cvt_pk_bf16_f32 v{PK+8*t+d}, v{o+2*d}, v{o+2*d+1}')
            I(f'buffer_store_dwordx4 {R(PK+8*t,4)}, v{vO}, {SRD(rA)}, s{sO1} offen offset:{2048*t}', tag='pub')
            I(f'buffer_store_dwordx2 {R(PK+8*t+4,2)}, v{vO2}, {SRD(rA)}, s{sO2} offen offset:{2048*t}', tag='pub')
        P.wait(lg=0)
        I('s_barrier')
        I(f'v_mov_b32 v{vT1}, {L_CK}')
        I(f'ds_read_b128 {R(RX,4)}, v{vT1}')
        self.slot_offsets(184)
        I(f'v_or3_b32 v{RX}, v{RX}, v{RX+1}, v{RX+2}')
        I(f'v_or_b32 v{RX}, v{RX}, v{RX+3}')
        I(f'v_readfirstlane_b32 s16, v{RX}')
        I(f's_andn2_b32 s16, s16, s{sFB}')
        I(f's_cbranch_scc1 Lfallback')
        I(f's_mov_b32 s{sFAST}, s72')

    def h_stream(self, r, dst):
        P = self.P
        P.I(f's_mul_i32 s13, s{sRB}, 221184')
        P.I(f's_lshl_b32 s14, s{sHG}, 2')
        P.I(f's_add_u32 s14, s14, s{sW}')
        P.I(f's_mul_i32 s14, s14, 6912')
        P.I(f's_add_u32 s13, s13, s14')
        P.I(f's_add_u32 s13, s13, {HF}')
        srd_off(P, r, sWS, 's13', 6912)
        for i in range(7):
            P.I(fragload(dst, r, i), nowaw=True)

    def touch_h(self, r, soff):
        return [f'v_lshlrev_b32 v{vT0}, 7, v{vLANE}', f'v_min_u32 v{vT0}, 6784, v{vT0}',
                (f'buffer_load_dword v{vT1}, v{vT0}, {SRD(r)}, s{soff} offen', 'touch')]

    def fallback(self):
        P = self.P
        I = P.I
        P.label('Lfallback')
        P.drain()
        MX = O_[0]
        I(f's_mov_b32 s{sFB}, 1')
        for q in range(4):
            I(f'v_mov_b32 v{MX+q}, 0xff800000')
        I(f's_and_b32 s13, s{sW}, 1')
        I(f's_mul_i32 s{sKV}, s13, {16*7168}')
        I(f's_mov_b32 s13, 16')
        P.label('Lfb_loop')
        I(f'buffer_load_dwordx4 {R(K16[0],4)}, v{vL16}, {SRD(rB)}, s{sKV} offen')
        I(f'buffer_load_dwordx4 {R(K16[1],4)}, v{vL16}, {SRD(rB)}, s{sKV} offen offset:1024')
        I(f'buffer_load_dwordx4 {R(K8P[0],4)}, v{vL16}, {SRD(rB)}, s{sKV} offen offset:2048')
        P.wait(vm=0)
        for e in range(2):
            for q in range(4):
                s = S_[q % 2]
                I(MF32(s, K16[e], Q16[q]))
                I(MF8(s, K8P[0] + 2 * e, Q8[q]))
                for r in range(0, 16, 2):
                    I(f'v_max3_f32 v{MX+q}, v{MX+q}, v{s+r}, v{s+r+1}')
        I(f's_add_u32 s{sKV}, s{sKV}, 7168')
        I('s_sub_u32 s13, s13, 1')
        I('s_cmp_lg_u32 s13, 0')
        I('s_cbranch_scc1 Lfb_loop')
        for q in range(4):
            I(f'v_mov_b32 v{MX+4+q}, v{MX+q}')
        for q in range(4):
            I(f'v_permlane32_swap_b32 v{MX+q}, v{MX+4+q}')
        for q in range(4):
            I(f'v_max_f32 v{MX+q}, v{MX+q}, v{MX+4+q}')
        I(f's_lshl_b32 s13, s{sW}, 10')
        I(f's_add_u32 s13, s13, {L_MX}')
        I(f's_xor_b32 s14, s13, 1024')
        I(f'v_add_u32 v{MX+8}, s13, v{vL16}')
        I(f'v_add_u32 v{MX+9}, s14, v{vL16}')
        I(f'ds_write_b128 v{MX+8}, {R(MX,4)}')
        P.wait(lg=0)
        I('s_barrier')
        I(f'ds_read_b128 {R(MX+4,4)}, v{MX+9}')
        I(f'v_cmp_le_u32 vcc, 32, v{vLANE}')
        for q in range(4):
            a, b, c = MX + 12, MX + 13, MX + 14
            I(f'v_max_f32 v{a}, v{MX+q}, v{MX+4+(q^2)}')
            I(f'v_sub_f32 v{a}, 0, v{a}')
            I(f'v_cvt_pk_bf16_f32 v{b}, v{a}, v{a}')
            I(f'v_and_b32 v{b}, 0xffff0000, v{b}')
            I(f'v_sub_f32 v{a}, v{a}, v{b}')
            I(f'v_cvt_pk_bf16_f32 v{c}, v{b}, v{a}')
            I(f'v_and_b32 v{b}, 0xffff0000, v{c}')
            I(f'v_sub_f32 v{a}, v{a}, v{b}')
            I(f'v_cvt_pk_bf16_f32 v{b}, v{a}, 0')
            I(f'v_cndmask_b32 v{Q8[q]}, v{Q8[q]}, v{c}, vcc')
            I(f'v_cndmask_b32 v{Q8[q]+1}, v{Q8[q]+1}, v{b}, vcc')
        I(f's_and_b32 s13, s{sW}, 1')
        I(f's_mul_i32 s{sKV}, s13, {16*7168}')
        for t in self.kv_loads(0) + self.kv_loads(1):
            I(t)
        P.drain()
        I('s_barrier')
        I('s_branch Lattn_main')
        P.forget()

    def slot_offsets(self, vS):
        P = self.P
        for j in range(4):
            P.I(f's_add_u32 s13, s{sW}, {j}')
            P.I(f's_and_b32 s13, s13, 3')
            P.I(f's_lshl_b32 s13, s13, 10')
            P.I(f'v_add_u32 v{vS+j}, s13, v{vL16}')

    def xs_srd(self, r, sbase, off):
        srd_off(self.P, r, sbase, off, 0x300000)

    def xs_setup(self, vTail, vSt):
        I = self.P.I
        I(f's_mul_i32 s{sXO}, s{sBLK}, 2560')
        I(f's_lshl_b32 s{sXO+1}, s{sBLK}, 7')
        I(f's_add_u32 s{sXO+1}, s{sXO+1}, {STT}')
        I(f'v_and_b32 v{vSt}, 15, v{vLANE}')
        I(f'v_lshrrev_b32 v{vT0}, 5, v{vLANE}')
        I(f'v_lshlrev_b32 v{vTail}, 8, v{vT0}')
        I(f'v_lshl_add_u32 v{vTail}, v{vSt}, 4, v{vTail}')
        I(f'v_bfe_u32 v{vT0}, v{vLANE}, 4, 1')
        I(f'v_lshl_add_u32 v{vTail}, v{vT0}, 3, v{vTail}')
        I(f'v_lshrrev_b32 v{vT0}, 4, v{vLANE}')
        I(f'v_lshlrev_b32 v{vSt}, 3, v{vSt}')
        I(f'v_lshl_add_u32 v{vSt}, v{vT0}, 30, v{vSt}')

    def red_setup(self, vW):
        I = self.P.I
        for j in range(4):
            I(f's_add_u32 s13, s{sW}, {j}')
            I(f's_and_b32 s13, s13, 3')
            I(f's_mul_i32 s13, s13, 15360')
            I(f's_add_u32 s13, s13, {L_RED + max(j-1, 0)*5120}')
            I(f'v_add_u32 v{vW+j}, s13, v{vL16}')

    def last_kstep(self, ACC, mf, vW, RES):
        P = self.P
        order = [(ct, j) for j in (1, 2, 3, 0) for ct in range(5)]
        pend = []
        for n, (ct, j) in enumerate(order):
            P.I(mf(ct, j))
            if j:
                pend.append((n, f'ds_write_b128 v{vW+j}, {R(ACC[ct][j],4)} offset:{1024*ct}'))
            if pend and n - pend[0][0] >= 5:
                P.I(pend.pop(0)[1])
        for _, t in pend:
            P.I(t)

    def reduce_tail(self, ACC, TMP, RES, vW, keep, loads, scaled):
        P = self.P
        I = P.I
        P.run(loads[:4])
        P.wait(lg=0)
        I('s_barrier')
        for ct in range(5):
            for j in range(3):
                I(f'ds_read_b128 {R(TMP + 12*ct + 4*j, 4)}, v{vW} offset:{5120*j + 1024*ct}')
        P.run(loads[4:])
        for ct in range(5):
            for d in range(2):
                t = ACC[ct][2] + 2 * d
                I(f'v_lshlrev_b32 v{t}, 16, v{RES+2*ct+d}')
                I(f'v_and_b32 v{t+1}, 0xffff0000, v{RES+2*ct+d}')
        for ct in range(5):
            a = ACC[ct][0]
            t = TMP + 12 * ct
            for r in (0, 2):
                I(f'v_pk_add_f32 {R(t+r,2)}, {R(t+r,2)}, {R(t+4+r,2)}')
            for r in (0, 2):
                I(f'v_pk_add_f32 {R(a+r,2)}, {R(a+r,2)}, {R(t+8+r,2)}')
            for r in (0, 2):
                I(f'v_pk_add_f32 {R(a+r,2)}, {R(a+r,2)}, {R(t+r,2)}')
            for r in (0, 2):
                if scaled:
                    I(f'v_pk_fma_f32 {R(a+r,2)}, {R(a+r,2)}, s[{sLN2}:{sLN2+1}], {R(ACC[ct][2]+r,2)}')
                else:
                    I(f'v_pk_add_f32 {R(a+r,2)}, {R(a+r,2)}, {R(ACC[ct][2]+r,2)}')
            for d in range(2):
                I(f'v_cvt_pk_bf16_f32 v{keep+2*ct+d}, v{a+2*d}, v{a+2*d+1}')

    def publish_x(self, ACC, keep, rX, vTail, vSt, T):
        P = self.P
        I = P.I
        I(f'buffer_store_dwordx4 {R(keep,4)}, v{vL16}, {SRD(rX)}, s{sXO} offen', tag='pub')
        I(f'buffer_store_dwordx4 {R(keep+4,4)}, v{vL16}, {SRD(rX)}, s{sXO} offen offset:1024', tag='pub')
        I(f'buffer_store_dwordx2 {R(keep+8,2)}, v{vTail}, {SRD(rX)}, s{sXO} offen offset:2048', tag='pub')
        a0 = ACC[0][0]
        I(f'v_pk_add_f32 {R(T,2)}, {R(a0,2)}, {R(a0+2,2)}')
        I(f'v_pk_mul_f32 {R(T+2,2)}, {R(a0,2)}, {R(a0,2)}')
        I(f'v_pk_fma_f32 {R(T+2,2)}, {R(a0+2,2)}, {R(a0+2,2)}, {R(T+2,2)}')
        for ct in range(1, 5):
            a = ACC[ct][0]
            for r in (0, 2):
                I(f'v_pk_add_f32 {R(T,2)}, {R(T,2)}, {R(a+r,2)}')
                I(f'v_pk_fma_f32 {R(T+2,2)}, {R(a+r,2)}, {R(a+r,2)}, {R(T+2,2)}')
        I(f'v_add_f32 v{T}, v{T}, v{T+1}')
        I(f'v_add_f32 v{T+1}, v{T+2}, v{T+3}')
        for sw in ('16', '32'):
            I(f'v_mov_b32 v{T+2}, v{T}')
            I(f'v_mov_b32 v{T+3}, v{T+1}')
            I(f'v_permlane{sw}_swap_b32 v{T}, v{T+2}')
            I(f'v_permlane{sw}_swap_b32 v{T+1}, v{T+3}')
            I(f'v_pk_add_f32 {R(T,2)}, {R(T,2)}, {R(T+2,2)}')
        I(f'buffer_store_dwordx2 {R(T,2)}, v{vSt}, {SRD(rX)}, s{sXO+1} offen', tag='pub')

    def wo_stage(self):
        P = self.P
        I = P.I
        ACC = [[8 + 16 * ct + 4 * j for j in range(4)] for ct in range(5)]
        B = [[88 + 16 * k + 4 * j for j in range(4)] for k in range(5)]
        A = [168 + 4 * j for j in range(4)]
        vS = 184
        vA = vT1
        I(f's_mul_i32 s13, s{sW}, 25600')
        I(f'v_add_u32 v{vA}, s13, v{vL16}')
        rd = lambda f: f'ds_read_b128 {R(A[f % 4],4)}, v{vA} offset:{1024*f}'
        P.wait_tag('wo')
        for f in range(3):
            I(rd(f))
        self.signal(0)
        self.stamp(3)
        self.wq_warm(0, 5, 8)
        self.poll(0, sMASK8)

        def bload(k):
            L = [f'buffer_load_dwordx4 {R(B[k][j],4)}, v{vS+j}, {SRD(rA)}, s{sRUN} offen sc1' for j in range(4)]
            if k < 4:
                L.append(f's_add_u32 s{sRUN}, s{sRUN}, 4096')
            return L
        P.run(bload(0) + bload(1))
        side = bload(2) + bload(3) + bload(4)
        self.stamp(4)
        RES, vTail, vSt = 88, 98, 99
        vW = vS
        A4 = [104, 108, 112, 116, 100]
        for k in range(4):
            for ct in range(5):
                f = 5 * k + ct
                for j in range(4):
                    I(MF16(ACC[ct][j], A[f % 4], B[k][j], k == 0))
                    if j == 0 and f + 3 < 20:
                        I(rd(f + 3))
                    if j == 1:
                        P.need(A[(f + 1) % 4], 4)
                    if j == 2 and ct == 4:
                        P.need(B[k + 1][3], 4)
                    if k == 2 and j == 2:
                        I(f'ds_read_b128 {R(A4[ct],4)}, v{vA} offset:{1024*(20+ct)}')
                    if k == 0 and side and (j >= 2 or ct == 4):
                        I(side.pop(0))
                        if side and side[0].startswith('s_'):
                            I(side.pop(0))
            if k == 0:
                assert not side, side
                self.xs_setup(vTail, vSt)
                I(f'buffer_load_dword v{RES}, v{vSt}, {SRD(rH)}, s{sXO+1} offen')
                P.I(f'buffer_load_dwordx4 {R(RES,4)}, v{vL16}, {SRD(rH)}, s{sXO} offen', nowaw=True)
                I(f'buffer_load_dwordx4 {R(RES+4,4)}, v{vL16}, {SRD(rH)}, s{sXO} offen offset:1024')
                I(f'buffer_load_dwordx2 {R(RES+8,2)}, v{vTail}, {SRD(rH)}, s{sXO} offen offset:2048')
                self.red_setup(vW)
        self.last_kstep(ACC, lambda ct, j: MF16(ACC[ct][j], A4[ct], B[4][j], False), vW, RES)
        self.stamp(5)
        self.reduce_tail(ACC, 104, RES, vW, 172, [], False)
        self.publish_x(ACC, 172, rH, vTail, vSt, 104)
        self.X1K = 172

    def ximage_setup(self, vXB, vSB):
        I = self.P.I
        I(f'v_and_b32 v{vSB}, 15, v{vLANE}')
        I(f'v_bfe_u32 v{vT0}, v{vLANE}, 4, 1')
        I(f'v_mul_u32_u24 v{vXB}, 20480, v{vT0}')
        I(f'v_lshl_add_u32 v{vXB}, v{vSB}, 4, v{vXB}')
        I(f'v_lshrrev_b32 v{vT0}, 5, v{vLANE}')
        I(f'v_lshl_add_u32 v{vXB}, v{vT0}, 8, v{vXB}')
        I(f'v_lshrrev_b32 v{vT0}, 4, v{vLANE}')
        I(f'v_lshlrev_b32 v{vSB}, 3, v{vSB}')
        I(f'v_lshl_add_u32 v{vSB}, v{vT0}, 8, v{vSB}')

    def ximage_srd(self, r):
        I = self.P.I
        I(f's_mul_i32 s13, s{sRB}, 81920')
        I(f's_add_u32 s13, s13, {XS}')
        srd_off(self.P, r, sWS, 's13', 81920)
        I(f's_lshr_b32 s13, s{sBLK}, 3')
        I(f's_lshl_b32 s13, s13, 10')
        I(f's_add_u32 s13, s13, {XS + STT}')
        srd_off(self.P, r + 4, sWS, 's13', 1024)
        I(f's_mul_i32 m0, s{sW}, 20480')

    def ximage_load(self, rX, vSB, SB):
        P = self.P
        I = P.I
        I(f'buffer_load_dwordx2 {R(SB,2)}, v{vSB}, {SRD(rX+4)}, 0 offen sc1')
        I(f'buffer_load_dwordx2 {R(SB+2,2)}, v{vSB}, {SRD(rX+4)}, 0 offen offset:128 sc1')
        L = []
        for i in range(20):
            g = []
            if i and i % 4 == 0:
                g.append('s_add_u32 m0, m0, 4096')
            g.append((f'buffer_load_dwordx4 v{vL16}, {SRD(rX)}, m0 offen offset:{1024*(i%4)} sc1 lds', f'x{i//5}'))
            L.append(g)
        P.run(flat(L[:10]))
        return L[10:]

    def xfrag(self, dst, vXB, ks, tt):
        return f'ds_read_b128 {R(dst,4)}, v{vXB} offset:{tt*40960 + ks*512}'

    def stats_final(self, s1, s2, T):
        a, b = T, T + 1
        L = []
        for s in (s1, s2):
            L += [f'v_mov_b32 v{a}, v{s}', f'v_permlane16_swap_b32 v{s}, v{a}', f'v_add_f32 v{s}, v{s}, v{a}',
                  f'v_mov_b32 v{a}, v{s}', f'v_permlane32_swap_b32 v{s}, v{a}', f'v_add_f32 v{s}, v{s}, v{a}']
        G = T + 4
        inv = '0x3acccccd'
        L += [f'v_mul_f32 v{s1}, {inv}, v{s1}',
              f'v_mul_f32 v{s2}, {inv}, v{s2}',
              f'v_fma_f32 v{s2}, -v{s1}, v{s1}, v{s2}',
              f'v_max_f32 v{s2}, 0, v{s2}',
              f'v_add_f32 v{s2}, 0x3727c5ac, v{s2}',
              f'v_rsq_f32 v{a}, v{s2}',
              f'v_sub_f32 v{s1}, 0, v{s1}',
              f'v_mul_f32 v{s2}, v{s2}, v{a}',
              f'v_cvt_pk_bf16_f32 v{G+1}, v{s1}, v{s2}',
              f'v_lshlrev_b32 v{b}, 16, v{G+1}',
              f'v_sub_f32 v{s1}, v{s1}, v{b}',
              f'v_cvt_pk_bf16_f32 v{G}, v{b}, v{s1}',
              f'v_and_b32 v{b}, 0xffff0000, v{G+1}',
              f'v_sub_f32 v{s2}, v{s2}, v{b}',
              f'v_cvt_pk_bf16_f32 v{G+2}, v{s2}, 0',
              f'v_mov_b32 v{G+3}, 0',
              f's_lshl_b32 s13, s{sW}, 4',
              f'v_and_b32 v{b}, 15, v{vLANE}',
              f'v_add_u32 v{b}, s13, v{b}',
              f'v_lshlrev_b32 v{s1}, 4, v{b}',
              f'v_lshlrev_b32 v{b}, 2, v{b}',
              f'v_add_u32 v{s1}, {L_EX}, v{s1}',
              f'v_add_u32 v{b}, {L_RS}, v{b}',
              f'ds_write_b128 v{s1}, {R(G,4)}',
              f'ds_write_b32 v{b}, v{a}']
        return L

    def stats_fetch(self, BX, RS, T):
        L = [f'v_and_b32 v{T}, 31, v{vLANE}', f'v_lshlrev_b32 v{T+1}, 2, v{T}', f'v_lshlrev_b32 v{T}, 4, v{T}',
             f'v_add_u32 v{T}, {L_EX}, v{T}', f'v_add_u32 v{T+1}, {L_RS}, v{T+1}']
        for tt in range(2):
            L.append(f'ds_read_b128 {R(BX[tt],4)}, v{T} offset:{512*tt}')
            L.append(f'ds_read_b32 v{RS[tt]}, v{T+1} offset:{128*tt}')
        return L

    def dual_pass(self, ACC, W, BB, vXB, SB, T, BX, RS, early, paced=None):
        P = self.P
        nb = len(BB)
        units = [(ks, tt) for ks in range(40) for tt in range(2)]
        AH = nb - 1
        pend_k = 0
        P.I(f'v_add_f32 v{SB}, v{SB}, v{SB+2}')
        P.I(f'v_add_f32 v{SB+1}, v{SB+1}, v{SB+3}')
        P.run(self.stats_final(SB, SB + 1, T))

        def arrive(c):
            P.wait_tag(f'x{c}')
            P.I('s_barrier')
        P.wait(lg=0)
        arrive(0)
        for u in range(AH):
            P.I(self.xfrag(BB[u % nb], vXB, *units[u]))
        P.run(self.stats_fetch(BX, RS, T))
        for u, (ks, tt) in enumerate(units):
            P.I(MF32(ACC[tt], W[ks], BB[u % nb], None if ks == 0 else ACC[tt]))
            un = u + AH
            if un < len(units):
                if un % 20 == 0:
                    arrive(un // 20)
                P.I(self.xfrag(BB[un % nb], vXB, *units[un]))
            if early:
                P.run(flat([early.pop(0)]))
            elif paced and u >= 24 and u % 2 == 0:
                P.I(paced.pop(0))
            if u + 1 < len(units):
                P.need(BB[(u + 1) % nb], 4)
                P.need(W[units[u + 1][0]], 4)
        for tt in range(2):
            P.I(MF32(ACC[tt], W[40], BX[tt], ACC[tt]))

    def mish_tile(self, acc, tt, C, T, rOut):
        PKB = T + 8
        L = []
        for g in range(4):
            a = acc + 4 * g
            t = T + 4 * (g % 2)
            u = T + 16
            L += [f'v_mul_f32 v{a+i}, v{a+i}, v{C[tt]}' for i in range(4)]
            L += [f'v_exp_f32 v{t+i}, v{a+i}' for i in range(4)]
            L += [f'v_fma_f32 v{u+i}, v{t+i}, 0.5, 1.0' for i in range(4)]
            L += [f'v_fma_f32 v{t+i}, v{t+i}, v{u+i}, 1.0' for i in range(4)]
            L += [f'v_rcp_f32 v{t+i}, v{t+i}' for i in range(4)]
            L += [f'v_fma_f32 v{a+i}, -v{a+i}, v{t+i}, v{a+i}' for i in range(4)]
            p = PKB + 4 * (g // 2) + 2 * (g % 2)
            L += [f'v_cvt_pk_bf16_f32 v{p}, v{a}, v{a+1}', f'v_cvt_pk_bf16_f32 v{p+1}, v{a+2}, v{a+3}']
            if g % 2 == 1:
                L.append((f'buffer_store_dwordx4 {R(PKB + 4*(g//2),4)}, v{self.vH}, {SRD(rOut)}, 0 offen offset:{tt*2048 + (g//2)*512}', 'pub'))
        return L

    def ffn1_stage(self):
        P = self.P
        I = P.I
        ACC = [8, 24, 40, 56]
        BB = [72 + 4 * j for j in range(6)]
        RESK = 96
        vXB, vSB, SB = 106, 107, 116
        C = [126, 127]
        BX = [132, 136]
        T = 140
        self.vH = 164
        for r in range(10):
            I(f'v_mov_b32 v{RESK+r}, v{self.X1K+r}')
        self.RESK = RESK
        self.ximage_setup(vXB, vSB)
        self.ximage_srd(rA)
        I(f's_mul_i32 s13, s{sRB}, 221184')
        I(f's_lshl_b32 s14, s{sT+2}, 12')
        I(f's_add_u32 s13, s13, s14')
        I(f's_add_u32 s13, s13, {HF}')
        I(f's_min_u32 s14, s{sT}, 4096')
        srd_off(P, rG, sWS, 's13', 's14')
        I(f's_add_u32 s13, s13, 4096')
        I(f's_min_u32 s14, s{sT+1}, 4096')
        srd_off(P, rH, sWS, 's13', 's14')
        I(f's_mul_i32 s13, s{sHG}, 276480')
        I(f's_mul_i32 s14, s{sW}, 71680')
        I(f's_add_u32 s13, s13, s14')
        I(f's_add_u32 s13, s13, {W2F}')
        I(f's_sub_u32 s14, 276480, s14')
        srd_off(P, rE, sWS, 's13', 's14')
        I(f'v_bfe_u32 v{vT0}, v{vLANE}, 4, 1')
        I(f'v_and_b32 v{self.vH}, 15, v{vLANE}')
        I(f'v_lshlrev_b32 v{self.vH}, 4, v{self.vH}')
        I(f'v_lshl_add_u32 v{self.vH}, v{vT0}, 10, v{self.vH}')
        I(f'v_lshrrev_b32 v{vT0}, 5, v{vLANE}')
        I(f'v_lshl_add_u32 v{self.vH}, v{vT0}, 8, v{self.vH}')
        self.signal(1)
        self.stamp(6)
        self.wq_warm(5, 11, 8)
        self.poll(1, sMASK1)
        early = self.ximage_load(rA, vSB, SB)
        self.stamp(7)
        w2 = [fragload(W1B[40], rD, 40)] + [fragload(W2R[f], rE, f) for f in range(70)]
        self.dual_pass(ACC[0:2], W1A, BB, vXB, SB, T, BX, C, early, w2)
        self.stamp(8)
        for tt in range(2):
            I(f'v_mul_f32 v{C[tt]}, 0x3fb8aa3b, v{C[tt]}')
        nb = len(BB)
        units = [(ks, tt) for tt in range(2) for ks in range(40)]
        main = []
        AH = nb - 1
        pre = [self.xfrag(BB[u % nb], vXB, *units[u]) for u in range(AH)]
        for u, (ks, tt) in enumerate(units):
            g = [MF32(ACC[2 + tt], W1B[ks], BB[u % nb], None if ks == 0 else ACC[2 + tt])]
            if u + AH < len(units):
                g.append(self.xfrag(BB[(u + AH) % nb], vXB, *units[u + AH]))
            if u % 5 in (0, 3):
                f = 70 - len(w2)
                assert f < 45 or (tt == 1 and f - 45 <= ks)
                g.append(w2.pop(0))
            if u + 1 < len(units):
                g.append(NEED(BB[(u + 1) % nb]))
            main.append(g)
            if ks == 39:
                main.append([MF32(ACC[2 + tt], W1B[40], BX[tt], ACC[2 + tt])])
        e0 = self.mish_tile(ACC[0], 0, C, T, rG)
        e1 = self.mish_tile(ACC[1], 1, C, T, rG)
        e2 = self.mish_tile(ACC[2], 0, C, T, rH)
        e3 = self.mish_tile(ACC[3], 1, C, T, rH)
        n1 = 55
        seq = weave_cost(main[:n1], e0 + e1) + weave_cost(main[n1:], e2)
        P.run(pre)
        seq = flat(seq)
        txt = lambda it: '' if callable(it) else (it[0] if isinstance(it, tuple) else it)
        if self.dbg.get('p3_noload'):
            seq = [it for it in seq if not txt(it).startswith('buffer_load')]
        if self.dbg.get('p3_nostore'):
            seq = [it for it in seq if not txt(it).startswith('buffer_store')]
        if self.dbg.get('p3_nods'):
            seq = [it for it in seq if not txt(it).startswith('ds_') and not callable(it)]
        if self.dbg.get('p3_novalu'):
            seq = [it for it in seq if not (txt(it).startswith('v_') and 'mfma' not in txt(it))]
        P.run(seq)
        self.stamp(9)
        P.run(e3[:27] + [w2.pop(0)] + e3[27:54] + [w2.pop(0)] + e3[54:80] + [w2.pop(0)] + e3[80:])
        self.w2_left = w2

    def ffn2_stage(self):
        P = self.P
        I = P.I
        ACC = [[8 + 16 * ct + 4 * j for j in range(4)] for ct in range(5)]
        vS, vW, vTail, vSt = 88, 92, 106, 107
        HB = HBUF[:31] + [HBUF[31]]
        ND = 4
        HB = HBUF[:4 * ND]
        self.slot_offsets(vS)
        self.red_setup(vW)
        self.xs_setup(vTail, vSt)
        I(f's_mul_i32 s13, s{sRB}, 221184')
        I(f's_add_u32 s13, s13, {HF}')
        srd_off(P, rA, sWS, 's13', 221184)
        I(f's_mul_i32 s{sRUN}, s{sW}, {14*4096}')
        self.xs_srd(rB, sWS, XS)
        self.wq_srd()
        I(f's_cmp_eq_u32 s{sMODE}, 2')
        I(f's_cselect_b32 s{rF+2}, 0, s{rF+2}')
        self.signal(2)
        self.stamp(10)
        P.run(self.w2_left)
        self.w2_left = []
        self.poll(2, sMASK8)

        def hload(k):
            L = [f'buffer_load_dwordx4 {R(HB[4*(k%ND)+j],4)}, v{vS+j}, {SRD(rA)}, s{sRUN} offen sc1' for j in range(4)]
            if k < 13:
                L.append(f's_add_u32 s{sRUN}, s{sRUN}, 4096')
            return L
        for k in range(2):
            P.run(hload(k))
        self.stamp(11)
        wq = 0
        P.run(hload(2))
        w2 = self.w2_left
        for k in range(13):
            side = hload(k + 3) if k + 3 < 14 else []
            other = None
            if w2 and k >= 1:
                assert (70 - len(w2)) // 5 > k + 1
                other = w2.pop(0)
            if not side:
                side = [fragload(WQR[wq + i], rF, wq + i) for i in range(4)]
                wq += 4
            n = 0
            for ct in range(5):
                for j in range(4):
                    I(MF16(ACC[ct][j], W2R[5 * k + ct], HB[4 * (k % ND) + j], k == 0))
                    if n % 5 == 1:
                        I(side.pop(0))
                        if side and side[0].startswith('s_'):
                            I(side.pop(0))
                    if n == 8 and other:
                        I(other)
                    if n == 18:
                        P.need(HB[4 * ((k + 1) % ND) + 3], 4)
                    n += 1
            assert not side
        assert not w2
        self.last_kstep(ACC, lambda ct, j: MF16(ACC[ct][j], W2R[65 + ct], HB[4 * (13 % ND) + j], False), vW, self.RESK)
        self.stamp(12)
        self.reduce_tail(ACC, 108, self.RESK, vW, 12, [fragload(WQR[wq + i], rF, wq + i) for i in range(8)], True)
        wq += 8
        I(f's_cmp_eq_u32 s{sMODE}, 2')
        I('s_cbranch_scc1 Lout')
        self.publish_x(ACC, 12, rB, vTail, vSt, 108)
        self.wq_next = wq

    def out_stage(self):
        P = self.P
        I = P.I
        P.label('Lout')
        I(f's_mul_i32 s13, s{sRB}, 81920')
        I(f's_mul_i32 s14, s{sHG}, 160')
        I(f's_add_u32 s13, s13, s14')
        I(f's_mul_i32 s14, s{sW}, 20480')
        I(f's_add_u32 s13, s13, s14')
        srd(P, rG, sOUT, sOUT + 1, 2048 * 1280)
        I(f'v_and_b32 v{vT1}, 15, v{vLANE}')
        I(f'v_mul_u32_u24 v{vT1}, 1280, v{vT1}')
        I(f'v_lshrrev_b32 v{vT0}, 4, v{vLANE}')
        I(f'v_lshl_add_u32 v{vT0}, v{vT0}, 3, v{vT1}')
        for ct in range(5):
            I(f'buffer_store_dwordx2 {R(12+2*ct,2)}, v{vT0}, {SRD(rG)}, s13 offen offset:{32*ct}')
        I('s_branch Lfin')
        P.forget()

    def qkv_stage(self):
        P = self.P
        I = P.I
        ACC = [8, 24]
        BB = [72 + 4 * j for j in range(6)]
        vXB, vSB, SB = 106, 107, 116
        RS = [126, 127]
        BX = [132, 136]
        T = 140
        self.ximage_setup(vXB, vSB)
        self.ximage_srd(rG)
        self.signal(3)
        self.stamp(13)
        for k in range(self.wq_next, self.WQ_EARLY):
            I(fragload(WQR[k], rF, k))
        self.poll(3, sMASK1)
        early = self.ximage_load(rG, vSB, SB)
        rest = [fragload(WQR[k], rF, k) for k in range(self.WQ_EARLY, 41)]
        early += [g for t in rest for g in ([t], [])]
        self.stamp(14)
        setup = self.qkv_out_setup()
        for i in range(10, len(early)):
            if not early[i] and setup:
                early[i] = flat([setup.pop(0), setup.pop(0) if setup else []])
        early += [flat([t]) for t in setup]
        self.dual_pass(ACC, WQR, BB, vXB, SB, T, BX, RS, early)
        self.stamp(15)
        self.qkv_epilogue(RS)
        P.label('Lfin')
        self.stamp(16)
        P.label('Lend')
        I('s_endpgm')
        P.forget()

    def qkv_out_setup(self):
        vC0, vC1, vVW, vVR, vVS, vL8 = 40, 41, 42, 43, 44, 45
        so = lambda d, off, n: [[f's_add_u32 s{d}, s{sLBN}, {off}', f's_addc_u32 s{d+1}, s{sLBN+1}, 0'],
                                f's_mov_b32 s{d+2}, {n}', f's_mov_b32 s{d+3}, 0x20000']
        L = [f's_lshl_b32 s17, s{sRB}, 3', f's_add_u32 s17, s17, s{sHG}', f's_mul_i32 s17, s17, 12288',
             f's_mul_i32 s18, s{sW}, 3072', f's_add_u32 s17, s17, s18', f's_add_u32 s17, s17, {QF}']
        L += so(rB, 's17', 3072)
        L += [f's_mul_i32 s17, s{sRB}, 7168', f's_add_u32 s17, s17, {KVF}',
              [f's_cmp_eq_u32 s{sHG}, 0', f's_cselect_b32 s18, 7168, 0'],
              [f's_cmp_lt_u32 s{sW}, 3', f's_cselect_b32 s18, s18, 0']]
        L += so(rC, 's17', 's18')
        L += [[f's_cmp_eq_u32 s{sHG}, 1', f's_cselect_b32 s18, 7168, 0']]
        L += so(rD, 's17', 's18')
        L += [f's_mov_b32 s15, 0x3f80', f's_mov_b32 s16, 0x3f803f80',
              [f's_cmp_eq_u32 s{sHG}, 0', f's_cselect_b32 s16, s16, s15', f's_cselect_b32 s15, s15, 0'],
              f'v_mov_b32 v{vC0}, s16', f'v_mov_b32 v{vC1}, s15',
              f's_lshl_b32 s15, s{sW}, 3', f's_add_u32 s16, s15, 1024',
              [f's_cmp_eq_u32 s{sW}, 2', f's_cselect_b32 s15, 2048, s15', f's_cselect_b32 s16, 2056, s16'],
              f's_lshl_b32 s17, s{sW}, 11', f's_add_u32 s17, s17, {L_VT}',
              f'v_lshrrev_b32 v{vT0}, 5, v{vLANE}', f'v_mul_u32_u24 v{vT0}, {4*144}, v{vT0}',
              f'v_and_b32 v{vT1}, 31, v{vLANE}', f'v_lshl_add_u32 v{vVW}, v{vT1}, 1, v{vT0}',
              f'v_add_u32 v{vVW}, s17, v{vVW}', f'v_and_b32 v{vT0}, 7, v{vLANE}', f'v_lshrrev_b32 v{vT1}, 3, v{vLANE}',
              f'v_mul_u32_u24 v{vVR}, 144, v{vT0}', f'v_lshl_add_u32 v{vVR}, v{vT1}, 4, v{vVR}',
              f'v_add_u32 v{vVR}, s17, v{vVR}', f'v_lshlrev_b32 v{vVS}, 9, v{vT1}',
              f'v_lshl_add_u32 v{vVS}, v{vT0}, 4, v{vVS}', f'v_lshlrev_b32 v{vL8}, 3, v{vLANE}',
              f's_lshl_b32 s19, s{sW}, 7']
        return L

    def qkv_epilogue(self, RS, PK=48, VB=64):
        P = self.P
        I = P.I
        ACC = [8, 24]
        qsb = struct.unpack('<I', struct.pack('<f', 20 ** -0.5 * math.log2(math.e)))[0]
        vC0, vC1, vVW, vVR, vVS, vL8 = 40, 41, 42, 43, 44, 45
        SC = [72, 74]
        I(f's_cmp_eq_u32 s{sW}, 2')
        I(f's_cselect_b32 vcc_hi, -1, 0')
        I(f's_mov_b32 vcc_lo, 0')
        for tt in range(2):
            I(f'v_mul_f32 v{SC[tt]}, {qsb:#x}, v{RS[tt]}')
            I(f'v_mul_f32 v{SC[tt]+1}, {qsb:#x}, v{RS[tt]}')
        for tt in range(2):
            a = ACC[tt]
            p = PK + 8 * tt
            for r in range(12, 16):
                I(f'v_mul_f32 v{a+r}, v{a+r}, v{RS[tt]}')
            for d in range(2):
                I(f'v_cvt_pk_bf16_f32 v{p+6+d}, v{a+12+2*d}, v{a+13+2*d}')
            I(f'v_cndmask_b32 v{p+6}, v{p+6}, v{vC0}, vcc')
            I(f'v_cndmask_b32 v{p+7}, v{p+7}, v{vC1}, vcc')
            I(f'buffer_store_dwordx2 {R(p+6,2)}, v{vL16}, {SRD(rC)}, s{15+tt} offen')
            I(f'ds_write_b16 v{vVW}, v{p+6} offset:{64*tt}')
            I(f'ds_write_b16_d16_hi v{vVW}, v{p+6} offset:{64*tt+144}')
            I(f'ds_write_b16 v{vVW}, v{p+7} offset:{64*tt+288}')
            I(f'ds_write_b16_d16_hi v{vVW}, v{p+7} offset:{64*tt+432}')
        I(f'ds_read_b128 {R(VB,4)}, v{vVR}')
        for tt in range(2):
            a = ACC[tt]
            p = PK + 8 * tt
            for r in range(0, 12, 2):
                I(f'v_pk_mul_f32 {R(a+r,2)}, {R(a+r,2)}, {R(SC[tt],2)}')
            for d in range(6):
                I(f'v_cvt_pk_bf16_f32 v{p+d}, v{a+2*d}, v{a+2*d+1}')
            I(f'buffer_store_dwordx4 {R(p,4)}, v{vL16}, {SRD(rB)}, 0 offen offset:{1536*tt}')
            I(f'buffer_store_dwordx2 {R(p+4,2)}, v{vL8}, {SRD(rB)}, 0 offen offset:{1536*tt+1024}')
        I(f'buffer_store_dwordx4 {R(VB,4)}, v{vVS}, {SRD(rD)}, s19 offen offset:3072')

    def build(self):
        self.prologue()
        self.attention()
        self.wo_stage()
        self.ffn1_stage()
        self.ffn2_stage()
        self.qkv_stage()
        self.out_stage()
        self.fallback()
```

```python
import sys, os
sys.path.insert(0, os.path.dirname(os.path.abspath(__file__)))
from asmlib import *
from layout import *
from front import gen_front
from main import Gen

NAME = 'interleave_layers__grouped_kv_mqa__dense_activation_mish__prompt'

def kd(name, vgpr, accum):
    return f'''.p2align 6
.amdhsa_kernel {name}
  .amdhsa_next_free_vgpr {vgpr}
  .amdhsa_next_free_sgpr 102
  .amdhsa_accum_offset {accum}
  .amdhsa_group_segment_fixed_size 0
  .amdhsa_kernarg_size 96
  .amdhsa_user_sgpr_count 2
  .amdhsa_user_sgpr_kernarg_segment_ptr 1
  .amdhsa_system_sgpr_workgroup_id_x 1
.end_amdhsa_kernel
'''

def build(dbg=None):
    ref = open(f'cdna_kernels/{NAME}.s.ref').read().splitlines() if os.path.exists(f'cdna_kernels/{NAME}.s.ref') else []
    hdr = [l for l in ref if l.startswith(';   offset') or l.startswith('; Kernarg')]
    hdr += ['; Generated by my own generator (gen/*.py): front (layer-1 QKV + weight re-layout), then one fused launch per layer.',
            f'; @launch kernel=front_kernel grid=(256,1,1) block=(256,1,1) lds={LDS_BYTES}',
            f'; @launch kernel=layer1_kernel grid=(256,1,1) block=(256,1,1) lds={LDS_BYTES}',
            f'; @launch kernel=layer2_kernel grid=(256,1,1) block=(256,1,1) lds={LDS_BYTES}']
    P = Prog()
    g = Gen(P, dbg)
    gen_front(g, 'layer2_kernel', 'Lcode_end-layer2_kernel')
    g.build()
    P.label('Lcode_end')
    out = '\n'.join(hdr) + '\n.amdgcn_target "amdgcn-amd-amdhsa--gfx950"\n.text\n'
    for k in ('front_kernel', 'layer1_kernel', 'layer2_kernel'):
        out += f'.globl {k}\n.type {k},@function\n'
    out += P.text()
    out += '.section .rodata,"a"\n'
    for k in ('front_kernel', 'layer1_kernel', 'layer2_kernel'):
        out += kd(k, 512, 256)
    return out, P

if __name__ == '__main__':
    dbg = {a.split('=')[0]: (a.split('=')[1] if '=' in a else True) for a in sys.argv[2:]}
    out, P = build(dbg)
    if dbg.get('plainld'):
        out = '\n'.join(l.replace(' sc1', '') if ('buffer_load_dwordx' in l) else l for l in out.split('\n'))
    if dbg.get('ntld'):
        out = '\n'.join(l.replace(' sc1', ' nt') if ('buffer_load_dwordx' in l) else l for l in out.split('\n'))
    if dbg.get('sc0ld'):
        out = '\n'.join(l.replace(' sc1', ' sc0') if ('buffer_load_dwordx' in l) else l for l in out.split('\n'))
    if dbg.get('plainst'):
        import re
        out = '\n'.join(re.sub(r' sc1$', '', l) if 'buffer_store' in l else l for l in out.split('\n'))
    path = sys.argv[1] if len(sys.argv) > 1 else f'cdna_kernels/{NAME}.s'
    open(path, 'w').write(out)
    print('wrote', path, len(out), 'bytes; nops', P.nnop, P.count)
```

```python
from asmlib import *
from layout import *
from common import *
import math, struct


class Gen:
    def __init__(self, P, dbg=None):
        self.P = P
        self.dbg = dbg or {}
        self.npoll = 0
        self.in_front = True

    def signal(self, stage):
        P = self.P
        P.wait_tag('pub')
        P.I(f's_cmp_lg_u32 s{sFAST}, 0')
        P.I(f's_cbranch_scc1 Lsigf{stage}')
        vm = list(P.vm)
        P.I('buffer_wbl2 sc1')
        P.I('s_waitcnt vmcnt(0)')
        P.I(f'buffer_store_dword v{vL16B}, v{vSIG}, {SRD(rFL)}, s{sFLO} offen offset:{stage*128} sc1')
        P.I(f's_branch Lsigd{stage}')
        P.label(f'Lsigf{stage}')
        P.vm = vm
        P.I(f'buffer_store_dword v{vL16B}, v{vSIG}, {SRD(rFL)}, s{sFLO} offen offset:{stage*128}')
        P.label(f'Lsigd{stage}')

    def poll(self, stage, smask):
        P = self.P
        n = self.npoll
        self.npoll += 1
        P.I(f's_mov_b32 s{sP0}, 0x400000')
        l4 = self.l4(8)
        P.label(f'Lpoll{n}')
        P.I(f'buffer_load_dword v{vT0}, v{l4}, {SRD(rFL)}, s{sFLO} offen offset:{stage*128} sc1')
        P.I(f's_sub_u32 s{sP0}, s{sP0}, 1')
        P.I(f's_cbranch_scc1 Lpolled{n}')
        P.I('s_waitcnt vmcnt(0)')
        P.I(f'v_cmp_ne_u32 vcc, 0, v{vT0}')
        P.I(f's_and_b32 s{sP1}, vcc_lo, s{smask}')
        P.I(f's_cmp_eq_u32 s{sP1}, s{smask}')
        P.I(f's_cbranch_scc0 Lpoll{n}')
        P.label(f'Lpolled{n}')
        P.I(f's_cmp_lg_u32 s{sFAST}, 0')
        P.I(f's_cbranch_scc1 Lacq{n}')
        P.I('buffer_inv sc1')
        P.I('s_waitcnt vmcnt(0)')
        P.label(f'Lacq{n}')
        P.forget()

    def stamp(self, k):
        if not self.dbg.get('stamps'):
            return
        P = self.P
        lg = list(P.lg)
        P.I('s_memtime s[100:101]')
        P.I('s_memrealtime s[98:99]')
        P.I('s_waitcnt lgkmcnt(0)')
        P.I(f'v_writelane_b32 v{vL4}, s100, {k}')
        P.I(f'v_writelane_b32 v{vL4}, s98, {32 + k}')
        if k == 16:
            P.I(f's_lshl_b32 s13, s{sMODE}, 20')
            P.I(f's_add_u32 s13, s13, 0xB00000')
            srd_off(P, 96, sWS, 's13', 0x100000)
            P.I(f's_lshl_b32 s13, s{sBLK}, 8')
            P.I(f'v_lshlrev_b32 v{vT0}, 2, v{vLANE}')
            P.I(f'buffer_store_dword v{vL4}, v{vT0}, s[96:99], s13 offen')
            if self.dbg.get('hdbg'):
                sel = {0: [(32, 0), (46, 1), (48, 2)], 1: [(32, 3), (33, 4), (34, 5), (38, 6), (42, 7), (45, 8), (48, 9), (1, 14), (2, 15)],
                       2: [(32, 10), (33, 11), (34, 12), (48, 13)]}
                P.I('s_load_dwordx2 s[96:97], s[0:1], 80')
                P.I(f's_lshl_b32 s13, s{sMODE}, 9')
                P.I('s_waitcnt lgkmcnt(0)')
                P.I('s_sub_u32 s96, s96, s13')
                P.I('s_subb_u32 s97, s97, 0')
                P.I(f's_add_u32 s96, s96, {int(self.dbg.get("hoff", 0))}')
                P.I('s_addc_u32 s97, s97, 0')
                P.I(f's_cmp_eq_u32 s{sBLK}, {int(self.dbg.get("hdbg"))}')
                P.I('s_cselect_b32 s98, 64, 0')
                P.I('s_mov_b32 s99, 0x20000')
                modes = [0] if self.in_front else [1, 2]
                P.I(f'v_mov_b32 v{vT0}, {OOB}')
                for m in modes:
                    P.I(f's_cmp_eq_u32 s{sMODE}, {m}')
                    for lane, slot in sel[m]:
                        P.I(f's_cselect_b32 s13, {slot*4}, {OOB}') if False else None
                    P.I(f's_cbranch_scc0 Lhd{m}')
                    for lane, slot in sel[m]:
                        P.I(f's_mov_b32 s13, {slot*4}')
                        P.I(f'v_writelane_b32 v{vT0}, s13, {lane}')
                    P.label(f'Lhd{m}')
                P.I(f'buffer_store_dword v{vL4}, v{vT0}, s[96:99], 0 offen')

    def l4(self, tmp):
        if not self.dbg.get('stamps'):
            return vL4
        self.P.I(f'v_lshrrev_b32 v{tmp}, 5, v{vLANE}')
        self.P.I(f'v_lshlrev_b32 v{tmp}, 28, v{tmp}')
        self.P.I(f'v_or_b32 v{tmp}, v{tmp}, v{vLANE}')
        self.P.I(f'v_lshlrev_b32 v{tmp}, 2, v{tmp}')
        return tmp

    def ids(self):
        I = self.P.I
        I(f'v_lshrrev_b32 v{vT0}, 6, v0')
        I(f'v_and_b32 v{vLANE}, 63, v0')
        I(f'v_readfirstlane_b32 s{sW}, v{vT0}')
        I(f'v_lshlrev_b32 v{vL16}, 4, v{vLANE}')
        I(f'v_add_u32 v{vL16B}, 4096, v{vL16}')
        I(f's_and_b32 s13, s2, 7')
        I(f's_lshr_b32 s14, s2, 6')
        I(f's_lshl_b32 s13, s13, 2')
        I(f's_add_u32 s{sRB}, s13, s14')
        I(f's_lshr_b32 s{sHG}, s2, 3')
        I(f's_and_b32 s{sHG}, s{sHG}, 7')
        I(f's_lshl_b32 s{sBLK}, s{sRB}, 2')
        I(f's_add_u32 s{sBLK}, s{sBLK}, s{sW}')
        I(f's_lshl_b32 s{sBLK}, s{sBLK}, 3')
        I(f's_add_u32 s{sBLK}, s{sBLK}, s{sHG}')

    def prologue(self):
        P = self.P
        I = P.I
        for name, mode in (('layer1_kernel', 1), ('layer2_kernel', 2)):
            P.raw('.p2align 8')
            P.raw(f'{name}:')
            I(f's_mov_b32 s{sMODE}, {mode}')
            if mode != 2:
                I('s_branch Lentry')
        P.label('Lentry')
        I('s_cmp_ge_u32 s2, 256')
        I('s_cbranch_scc1 Lend')
        I(f's_load_dwordx2 s[{sWS}:{sWS+1}], s[0:1], 88')
        I(f's_load_dwordx2 s[{sOUT}:{sOUT+1}], s[0:1], 72')
        self.ids()
        I(f's_mul_i32 s14, s{sMODE}, {LSTR}')
        I(f's_add_u32 s14, s14, {LAY0 - LSTR}')
        P.wait(lg=0)
        I(f's_add_u32 s{sLB}, s{sWS}, s14')
        I(f's_addc_u32 s{sLB+1}, s{sWS+1}, 0')
        self.stamp(0)

    WQ_EARLY = 23

    def late_setup(self):
        P = self.P
        I = P.I
        if not self.dbg.get('stamps'):
            I(f'v_lshrrev_b32 v{vT1}, 5, v{vLANE}')
            I(f'v_lshlrev_b32 v{vL4}, 2, v{vLANE}')
            I(f'v_lshl_add_u32 v{vL4}, v{vT1}, 30, v{vL4}')
        I(f'v_mov_b32 v{vIDX}, 0xdddddddd')
        I(f's_mov_b32 s{sFB}, 0')
        I(f's_lshl_b32 s13, s{sW}, 3')
        I(f's_lshl_b32 s{sMASK8}, 0xff, s13')
        I(f's_lshl_b32 s{sMASK1}, 0x11111111, s{sW}')
        I(f's_lshl_b32 s13, s{sHG}, 2')
        I(f's_add_u32 s13, s13, s{sW}')
        I(f's_lshl_b32 s13, s13, 2')
        I(f'v_mov_b32 v{vSIG}, {OOB}')
        I(f'v_mov_b32 v{vT1}, s13')
        I(f'v_cmp_eq_u32 vcc, 0, v{vLANE}')
        I(f'v_cndmask_b32 v{vSIG}, v{vSIG}, v{vT1}, vcc')
        I(f's_lshr_b32 s15, s{sMODE}, 1')
        I(f's_lshl_b32 s15, s15, 5')
        I(f's_add_u32 s15, s15, s{sRB}')
        I(f's_lshl_b32 s{sFLO}, s15, 10')
        srd_off(P, rFL, sWS, FLG, 65536)

    def wq_warm(self, lo, hi, dst):
        P = self.P
        if not self.dbg.get('wqwarm'):
            return
        P.I(f's_cmp_eq_u32 s{sMODE}, 2')
        P.I(f's_cbranch_scc1 Lwqw{lo}')
        if lo == 0:
            self.wq_srd()
            P.I(f's_and_b32 s13, s{sRB}, 3')
            P.I(f's_lshl_b32 s13, s13, 10')
            P.I(f's_add_u32 s{rF}, s{rF}, s13')
            P.I(f's_addc_u32 s{rF+1}, s{rF+1}, 0')
            P.I(f's_sub_u32 s{rF+2}, s{rF+2}, s13')
        for i in range(lo, hi):
            P.I(fragload(dst, rF, 4 * i), nowaw=True)
        P.label(f'Lwqw{lo}')

    def wq_srd(self):
        P = self.P
        P.I(f's_lshl_b32 s13, s{sHG}, 2')
        P.I(f's_add_u32 s13, s13, s{sW}')
        P.I(f's_mul_i32 s13, s13, {TILE}')
        srd_off(P, rF, sWS, 's13', TILE)

    def kv_loads(self, i):
        e, kb, vb = i % 2, K16[i % 3], V_[i % 3]
        L = []
        if e == 0:
            L.append(f'buffer_load_dwordx4 {R(vb,4)}, v{vL16}, {SRD(rB)}, s{sKV} offen offset:3072')
            L.append(f'buffer_load_dwordx4 {R(vb+4,4)}, v{vL16B}, {SRD(rB)}, s{sKV} offen')
            L.append(f'buffer_load_dwordx4 {R(K8P[(i//2)%2],4)}, v{vL16}, {SRD(rB)}, s{sKV} offen offset:2048')
        else:
            L.append(f'buffer_load_dwordx4 {R(vb,4)}, v{vL16B}, {SRD(rB)}, s{sKV} offen offset:1024')
            L.append(f'buffer_load_dwordx4 {R(vb+4,4)}, v{vL16B}, {SRD(rB)}, s{sKV} offen offset:2048')
        L.append(f'buffer_load_dwordx4 {R(kb,4)}, v{vL16}, {SRD(rB)}, s{sKV} offen offset:{1024*e}')
        return L

    def attention(self):
        P = self.P
        I = P.I
        I(f's_lshl_b32 s13, s{sRB}, 3')
        I(f's_add_u32 s13, s13, s{sHG}')
        I(f's_mul_i32 s13, s13, 12288')
        I(f's_add_u32 s13, s13, {QF}')
        srd_off(P, rA, sLB, 's13', 12288)
        srd_off(P, rB, sLB, KVF, 32 * 7168)
        I(f's_and_b32 s13, s{sW}, 1')
        I(f's_mul_i32 s{sKV}, s13, {16*7168}')
        for t in self.kv_loads(0)[::-1]:
            I(t)
        I(f's_mul_i32 s14, s{sW}, 3072')
        I(f's_xor_b32 s15, s{sW}, 1')
        I(f's_mul_i32 s15, s15, 3072')
        I(f'v_lshlrev_b32 v{vT0}, 3, v{vLANE}')
        for q in range(4):
            so = 's15' if q < 2 else 's14'
            I(f'buffer_load_dwordx4 {R(Q16[q],4)}, v{vL16}, {SRD(rA)}, {so} offen offset:{(q%2)*1536}')
            I(f'buffer_load_dwordx2 {R(Q8[q],2)}, v{vT0}, {SRD(rA)}, {so} offen offset:{(q%2)*1536+1024}')
        for t in self.kv_loads(1):
            I(t)
        I(f's_lshr_b32 s13, s2, 3')
        I(f's_mul_i32 s13, s13, 7168')
        I(f's_mul_i32 s14, s{sW}, 1792')
        I(f's_add_u32 s13, s13, s14')
        I(f'buffer_load_dwordx4 {R(S_[2],4)}, v{vL16}, {SRD(rB)}, s13 offen')
        I(f'buffer_load_dwordx4 {R(S_[2]+4,4)}, v{vL16}, {SRD(rB)}, s13 offen offset:1024')
        I(f's_mul_i32 s16, s{sRB}, 221184')
        I(f's_add_u32 s16, s16, {HF}')
        srd_off(P, rA, sWS, 's16', 221184)
        I(f's_lshl_b32 s18, s{sHG}, 2')
        I(f's_add_u32 s18, s18, s{sW}')
        I(f's_mul_i32 s{sT+8}, s18, 6912')
        I(f's_add_u32 s{rG}, s{rA}, s{sT+8}')
        I(f's_addc_u32 s{rG+1}, s{rA+1}, 0')
        self.late_setup()
        I(f's_getreg_b32 s{sFAST}, hwreg(HW_REG_XCC_ID, 0, 4)')
        I(f's_add_u32 s{sFAST}, s{sFAST}, 1')
        I(f'v_mov_b32 v{vT1}, s{sFAST}')
        I(f'buffer_store_dword v{vT1}, v{vSIG}, {SRD(rFL)}, s{sFLO} offen offset:512 sc1')
        for j in range(1, 10):
            I(f's_mov_b32 s{sK8+j}, {8192*j}')
        I(f's_add_u32 s{sLBN}, s{sLB}, {LSTR}')
        I(f's_addc_u32 s{sLBN+1}, s{sLB+1}, 0')
        I(f's_mov_b32 s{sLN2}, 0x3f317218')
        I(f's_mov_b32 s{sLN2+1}, 0x3f317218')
        I(f's_mul_i32 s13, s{sHG}, 7')
        I(f's_lshl_b32 s14, s{sW}, 1')
        I(f's_add_u32 s13, s13, s14')
        I(f's_cmp_lt_u32 s13, 54')
        I(f's_cselect_b32 s{sT}, {TILE}, 0')
        I(f's_add_u32 s15, s13, 1')
        I(f's_cmp_lt_u32 s15, 54')
        I(f's_cselect_b32 s{sT+1}, {TILE}, 0')
        I(f's_cmp_lt_u32 s{sW}, 3')
        I(f's_cselect_b32 s{sT+1}, s{sT+1}, 0')
        I(f's_mov_b32 s{sT+2}, s13')
        I(f's_mul_i32 s14, s13, {TILE}')
        I(f's_add_u32 s14, s14, {W1F}')
        srd_off(P, rC, sWS, 's14', f's{sT}')
        I(f's_add_u32 s14, s14, {TILE}')
        srd_off(P, rD, sWS, 's14', f's{sT+1}')
        I(f's_mul_i32 s14, s{sHG}, 102400')
        I(f's_add_u32 s14, s14, {WOF}')
        srd_off(P, rE, sWS, 's14', 102400)
        P.label('Lattn_main')
        I(f's_mul_i32 m0, s{sW}, 25600')
        for r in range(64):
            I(f'v_mov_b32 v{O_[0]+r}, 0')
        pre = []
        for k in range(41):
            pre.append([fragload(W1A[k], rC, k)])
        for k in range(25):
            g = []
            if k and k % 4 == 0:
                g.append('s_add_u32 m0, m0, 4096')
            g.append((f'buffer_load_dwordx4 v{vL16}, {SRD(rE)}, m0 offen offset:{(k%4)*1024} lds', 'wo'))
            pre.append(g)
        for k in range(39):
            pre.append([fragload(W1B[k], rD, k)])
        if self.dbg.get('w2warm'):
            for i in range(18):
                pre.append([(fragload(W1B[39], rF, 4 * i), 'touch')])
        pre.append([(fragload(W1B[39], rD, 39), 'touch')])
        NW = 128
        extra = [[] for _ in range(NW)]
        for i in range(30):
            g = []
            if i % 2 == 0:
                g.append(f's_add_u32 s{sKV}, s{sKV}, 7168')
            if not self.dbg.get('nokv'):
                extra[4 * i + 1] += g + self.kv_loads(i + 2)
        if self.dbg.get('nopre'):
            pre = []
        slots = [n for n in range(1, 118) if n % 4 in (1, 2)] + [118, 119, 120, 122, 123]
        if self.dbg.get('slots03'):
            slots = [n for n in range(2, 124) if n % 4 in (0, 3)]
        npair = (len(pre) + 1) // 2
        assert npair <= len(slots)
        for k, g in enumerate(pre):
            extra[slots[(k // 2) * len(slots) // npair]] += g

        def M1(n):
            return MF32(S_[n % 3], K16[(n // 4) % 3], Q16[n % 4])

        def M2(n):
            i = n // 4
            return MF8(S_[n % 3], K8P[(i // 2) % 2] + 2 * (i % 2), Q8[n % 4])

        def P1(n):
            return SMF(O_[n % 4], V_[(n // 4) % 3], S_[n % 3])

        def P2(n):
            return SMF(O_[n % 4], V_[(n // 4) % 3] + 4, S_[n % 3] + 8)

        sO1, sO2, sXW, sXR = sT + 3, sT + 6, sT + 7, sT + 9
        free = [f's_mul_i32 s{sXW}, s{sW}, 6144', f's_add_u32 s{sXW}, s{sXW}, {L_RED}',
                f's_xor_b32 s{sXR}, s{sW}, 1', f's_mul_i32 s{sXR}, s{sXR}, 6144', f's_add_u32 s{sXR}, s{sXR}, {L_RED}',
                f's_and_b32 s13, s{sHG}, 1', f's_mul_i32 s13, s13, 10', f's_lshl_b32 s14, s{sW}, 1',
                f's_add_u32 s14, s14, s13', f's_lshr_b32 s15, s{sW}, 1', f's_add_u32 s15, s15, s13',
                f's_add_u32 s15, s15, 8', f's_lshr_b32 s16, s{sHG}, 1', f's_mul_i32 s16, s16, {5*4096}',
                f's_lshr_b32 s17, s14, 2', f's_lshl_b32 s17, s17, 12', f's_and_b32 s14, s14, 3',
                f's_lshl_b32 s14, s14, 8', f's_add_u32 s14, s14, s17', f's_add_u32 s{sO1}, s14, s16',
                f's_lshr_b32 s17, s15, 2', f's_lshl_b32 s17, s17, 12', f's_and_b32 s15, s15, 3',
                f's_lshl_b32 s15, s15, 8', f's_add_u32 s15, s15, s17', f's_add_u32 s15, s15, s16',
                f's_and_b32 s17, s{sW}, 1', f's_lshl_b32 s17, s17, 3', f's_add_u32 s{sO2}, s15, s17',
                [f's_add_u32 s{rH}, s{sWS}, {XS}', f's_addc_u32 s{rH+1}, s{sWS+1}, 0'],
                f's_mov_b32 s{rH+2}, 0x300000', f's_mov_b32 s{rH+3}, 0x20000',
                f's_mul_i32 s{sRUN}, s{sW}, {5*4096}']
        if self.dbg.get('w2warm'):
            free += [f's_mul_i32 s16, s{sHG}, 276480', f's_mul_i32 s17, s{sW}, 71680', f's_and_b32 s18, s{sRB}, 3',
                     f's_lshl_b32 s18, s18, 10', f's_add_u32 s17, s17, s18', f's_add_u32 s16, s16, s17', f's_add_u32 s16, s16, {W2F}',
                     [f's_add_u32 s{rF}, s{sWS}, s16', f's_addc_u32 s{rF+1}, s{sWS+1}, 0'],
                     f's_sub_u32 s{rF+2}, 276480, s17', f's_mov_b32 s{rF+3}, 0x20000']
        extra[118] += self.touch_h(rA, sT + 8)
        nst = int(self.dbg.get('nst', 108))
        stouch = [f's_load_dword s{rG+2}, s[{rG}:{rG+1}], {(6912 // nst) * i}' for i in range(nst)]
        vW, vRd, vID = vT0, vT1, K8P[0]
        self.stamp(1)
        I(M1(0))
        I(M2(0))
        for n in range(NW):
            s = S_[n % 3]
            E = [f'v_exp_f32 v{s+r}, v{s+r}' for r in range(16)]
            seq = []
            if n + 1 < NW:
                seq.append(M1(n + 1))
            if n >= 8 and free:
                f = free.pop(0)
                if isinstance(f, list):
                    extra[n] = f + extra[n]
                else:
                    seq.append(f)
            seq += E[0:4]
            if n + 1 < NW:
                seq.append(M2(n + 1))
            seq += E[4:8]
            if n > 0:
                seq.append(P2(n - 1))
            seq += extra[n]
            if n == 121:
                seq.append(lambda P: P.I(f'buffer_load_dword v{vID}, v{self.l4(vID + 1)}, {SRD(rFL)}, s{sFLO} offen offset:512 sc1'))
            if n == 127:
                seq += [f'ds_write_b128 v{vW}, {R(O_[1] + 4*j, 4)} offset:{1024*(3+j)}' for j in range(3)]
            seq += E[8:12]
            seq.append(P1(n))
            if stouch:
                seq.append((stouch.pop(0), 'touch'))
            if n % 4 == 2 and n + 2 < NW:
                seq.append(NEED(K16[((n + 2) // 4) % 3]))
            if n == 125:
                seq += [f'v_add_u32 v{vW}, s{sXW}, v{vL16}', f'v_add_u32 v{vRd}, s{sXR}, v{vL16}']
            if n == 126:
                seq += [f'ds_write_b128 v{vW}, {R(O_[0] + 4*j, 4)} offset:{1024*j}' for j in range(3)]
            seq += E[12:16]
            P.run(seq)
        assert not free and not stouch, len(stouch)
        P.wait(lg=0)
        I('s_barrier')
        RX = O_[0]
        for j in range(6):
            I(f'ds_read_b128 {R(RX + 4*j, 4)}, v{vRd} offset:{1024*j}')
        I(P2(NW - 1))
        self.stamp(2)
        vO, vO2, vHF = S_[0], S_[0] + 1, S_[0] + 2
        I(f'v_lshrrev_b32 v{vHF}, 5, v{vLANE}')
        I(f'v_and_b32 v{vO}, 15, v{vLANE}')
        I(f'v_lshlrev_b32 v{vO}, 4, v{vO}')
        I(f'v_bfe_u32 v{vT0}, v{vLANE}, 4, 1')
        I(f'v_lshl_add_u32 v{vO2}, v{vT0}, 10, v{vO}')
        I(f'v_lshl_add_u32 v{vO}, v{vHF}, 8, v{vO2}')
        I(f'v_lshl_add_u32 v{vO2}, v{vHF}, 30, v{vO2}')
        I(f'v_cmp_eq_u32 vcc, s{sFAST}, v{vID}')
        I(f's_mov_b32 s16, 0x21800000')
        I(f's_mov_b32 s17, 0x5f800000')
        I(f's_cmp_eq_u32 vcc_lo, -1')
        I(f's_cselect_b32 s72, 1, 0')
        if self.dbg.get('forceslow'):
            I(f's_mov_b32 s72, 0')
        OWN = [O_[2], O_[3]]
        vl = [S_[0] + 4, S_[0] + 6]
        PK = S_[0] + 8
        for t in range(2):
            o = OWN[t]
            for j in (4, 5, 0, 1, 2, 3):
                I(f'v_pk_add_f32 {R(o + 2*j, 2)}, {R(o + 2*j, 2)}, {R(RX + 12*t + 2*j, 2)}')
            I(f'v_mov_b32 v{vl[t]}, v{o + 8}')
            I(f'v_mov_b32 v{vl[t]+1}, v{o + 8}')
            I(f'v_permlane32_swap_b32 v{vl[t]}, v{vl[t]+1}')
            I(f'v_rcp_f32 v{vl[t]}, v{vl[t]+1}')
        I(f'v_cmp_le_f32 vcc, s16, v{vl[0]+1}')
        I(f'v_cmp_ge_f32 s[18:19], s17, v{vl[0]+1}')
        I(f's_and_b64 s[{sT+4}:{sT+5}], vcc, s[18:19]')
        I(f'v_cmp_le_f32 vcc, s16, v{vl[1]+1}')
        I(f'v_cmp_ge_f32 s[18:19], s17, v{vl[1]+1}')
        I(f's_and_b64 s[{sT+4}:{sT+5}], s[{sT+4}:{sT+5}], vcc')
        I(f's_and_b64 s[{sT+4}:{sT+5}], s[{sT+4}:{sT+5}], s[18:19]')
        I(f's_cmp_eq_u64 s[{sT+4}:{sT+5}], -1')
        I(f's_cselect_b32 s16, 0, 1')
        if self.dbg.get('forcefb'):
            I('s_mov_b32 s16, 1')
        I(f's_lshl_b32 s17, s{sW}, 2')
        I(f's_add_u32 s17, s17, {L_CK}')
        I(f'v_mov_b32 v{vT0}, s16')
        I(f'v_mov_b32 v{vT1}, s17')
        I(f'ds_write_b32 v{vT1}, v{vT0}')
        for t in range(2):
            o = OWN[t]
            I(f'v_mov_b32 v{vl[t]+1}, v{vl[t]}')
            for j in range(6):
                I(f'v_pk_mul_f32 {R(o + 2*j, 2)}, {R(o + 2*j, 2)}, {R(vl[t], 2)}')
            for d in range(6):
                I(f'v_cvt_pk_bf16_f32 v{PK+8*t+d}, v{o+2*d}, v{o+2*d+1}')
            I(f'buffer_store_dwordx4 {R(PK+8*t,4)}, v{vO}, {SRD(rA)}, s{sO1} offen offset:{2048*t}', tag='pub')
            I(f'buffer_store_dwordx2 {R(PK+8*t+4,2)}, v{vO2}, {SRD(rA)}, s{sO2} offen offset:{2048*t}', tag='pub')
        P.wait(lg=0)
        I('s_barrier')
        I(f'v_mov_b32 v{vT1}, {L_CK}')
        I(f'ds_read_b128 {R(RX,4)}, v{vT1}')
        self.slot_offsets(184)
        I(f'v_or3_b32 v{RX}, v{RX}, v{RX+1}, v{RX+2}')
        I(f'v_or_b32 v{RX}, v{RX}, v{RX+3}')
        I(f'v_readfirstlane_b32 s16, v{RX}')
        I(f's_andn2_b32 s16, s16, s{sFB}')
        I(f's_cbranch_scc1 Lfallback')
        I(f's_mov_b32 s{sFAST}, s72')

    def h_stream(self, r, dst):
        P = self.P
        P.I(f's_mul_i32 s13, s{sRB}, 221184')
        P.I(f's_lshl_b32 s14, s{sHG}, 2')
        P.I(f's_add_u32 s14, s14, s{sW}')
        P.I(f's_mul_i32 s14, s14, 6912')
        P.I(f's_add_u32 s13, s13, s14')
        P.I(f's_add_u32 s13, s13, {HF}')
        srd_off(P, r, sWS, 's13', 6912)
        for i in range(7):
            P.I(fragload(dst, r, i), nowaw=True)

    def touch_h(self, r, soff):
        return [f'v_lshlrev_b32 v{vT0}, 7, v{vLANE}', f'v_min_u32 v{vT0}, 6784, v{vT0}',
                (f'buffer_load_dword v{vT1}, v{vT0}, {SRD(r)}, s{soff} offen', 'touch')]

    def fallback(self):
        P = self.P
        I = P.I
        P.label('Lfallback')
        P.drain()
        MX = O_[0]
        I(f's_mov_b32 s{sFB}, 1')
        for q in range(4):
            I(f'v_mov_b32 v{MX+q}, 0xff800000')
        I(f's_and_b32 s13, s{sW}, 1')
        I(f's_mul_i32 s{sKV}, s13, {16*7168}')
        I(f's_mov_b32 s13, 16')
        P.label('Lfb_loop')
        I(f'buffer_load_dwordx4 {R(K16[0],4)}, v{vL16}, {SRD(rB)}, s{sKV} offen')
        I(f'buffer_load_dwordx4 {R(K16[1],4)}, v{vL16}, {SRD(rB)}, s{sKV} offen offset:1024')
        I(f'buffer_load_dwordx4 {R(K8P[0],4)}, v{vL16}, {SRD(rB)}, s{sKV} offen offset:2048')
        P.wait(vm=0)
        for e in range(2):
            for q in range(4):
                s = S_[q % 2]
                I(MF32(s, K16[e], Q16[q]))
                I(MF8(s, K8P[0] + 2 * e, Q8[q]))
                for r in range(0, 16, 2):
                    I(f'v_max3_f32 v{MX+q}, v{MX+q}, v{s+r}, v{s+r+1}')
        I(f's_add_u32 s{sKV}, s{sKV}, 7168')
        I('s_sub_u32 s13, s13, 1')
        I('s_cmp_lg_u32 s13, 0')
        I('s_cbranch_scc1 Lfb_loop')
        for q in range(4):
            I(f'v_mov_b32 v{MX+4+q}, v{MX+q}')
        for q in range(4):
            I(f'v_permlane32_swap_b32 v{MX+q}, v{MX+4+q}')
        for q in range(4):
            I(f'v_max_f32 v{MX+q}, v{MX+q}, v{MX+4+q}')
        I(f's_lshl_b32 s13, s{sW}, 10')
        I(f's_add_u32 s13, s13, {L_MX}')
        I(f's_xor_b32 s14, s13, 1024')
        I(f'v_add_u32 v{MX+8}, s13, v{vL16}')
        I(f'v_add_u32 v{MX+9}, s14, v{vL16}')
        I(f'ds_write_b128 v{MX+8}, {R(MX,4)}')
        P.wait(lg=0)
        I('s_barrier')
        I(f'ds_read_b128 {R(MX+4,4)}, v{MX+9}')
        I(f'v_cmp_le_u32 vcc, 32, v{vLANE}')
        for q in range(4):
            a, b, c = MX + 12, MX + 13, MX + 14
            I(f'v_max_f32 v{a}, v{MX+q}, v{MX+4+(q^2)}')
            I(f'v_sub_f32 v{a}, 0, v{a}')
            I(f'v_cvt_pk_bf16_f32 v{b}, v{a}, v{a}')
            I(f'v_and_b32 v{b}, 0xffff0000, v{b}')
            I(f'v_sub_f32 v{a}, v{a}, v{b}')
            I(f'v_cvt_pk_bf16_f32 v{c}, v{b}, v{a}')
            I(f'v_and_b32 v{b}, 0xffff0000, v{c}')
            I(f'v_sub_f32 v{a}, v{a}, v{b}')
            I(f'v_cvt_pk_bf16_f32 v{b}, v{a}, 0')
            I(f'v_cndmask_b32 v{Q8[q]}, v{Q8[q]}, v{c}, vcc')
            I(f'v_cndmask_b32 v{Q8[q]+1}, v{Q8[q]+1}, v{b}, vcc')
        I(f's_and_b32 s13, s{sW}, 1')
        I(f's_mul_i32 s{sKV}, s13, {16*7168}')
        for t in self.kv_loads(0) + self.kv_loads(1):
            I(t)
        P.drain()
        I('s_barrier')
        I('s_branch Lattn_main')
        P.forget()

    def slot_offsets(self, vS):
        P = self.P
        for j in range(4):
            P.I(f's_add_u32 s13, s{sW}, {j}')
            P.I(f's_and_b32 s13, s13, 3')
            P.I(f's_lshl_b32 s13, s13, 10')
            P.I(f'v_add_u32 v{vS+j}, s13, v{vL16}')

    def xs_srd(self, r, sbase, off):
        srd_off(self.P, r, sbase, off, 0x300000)

    def xs_setup(self, vTail, vSt):
        I = self.P.I
        I(f's_mul_i32 s{sXO}, s{sBLK}, 2560')
        I(f's_lshl_b32 s{sXO+1}, s{sBLK}, 7')
        I(f's_add_u32 s{sXO+1}, s{sXO+1}, {STT}')
        I(f'v_and_b32 v{vSt}, 15, v{vLANE}')
        I(f'v_lshrrev_b32 v{vT0}, 5, v{vLANE}')
        I(f'v_lshlrev_b32 v{vTail}, 8, v{vT0}')
        I(f'v_lshl_add_u32 v{vTail}, v{vSt}, 4, v{vTail}')
        I(f'v_bfe_u32 v{vT0}, v{vLANE}, 4, 1')
        I(f'v_lshl_add_u32 v{vTail}, v{vT0}, 3, v{vTail}')
        I(f'v_lshrrev_b32 v{vT0}, 4, v{vLANE}')
        I(f'v_lshlrev_b32 v{vSt}, 3, v{vSt}')
        I(f'v_lshl_add_u32 v{vSt}, v{vT0}, 30, v{vSt}')

    def red_setup(self, vW):
        I = self.P.I
        for j in range(4):
            I(f's_add_u32 s13, s{sW}, {j}')
            I(f's_and_b32 s13, s13, 3')
            I(f's_mul_i32 s13, s13, 15360')
            I(f's_add_u32 s13, s13, {L_RED + max(j-1, 0)*5120}')
            I(f'v_add_u32 v{vW+j}, s13, v{vL16}')

    def last_kstep(self, ACC, mf, vW, RES):
        P = self.P
        order = [(ct, j) for j in (1, 2, 3, 0) for ct in range(5)]
        pend = []
        for n, (ct, j) in enumerate(order):
            P.I(mf(ct, j))
            if j:
                pend.append((n, f'ds_write_b128 v{vW+j}, {R(ACC[ct][j],4)} offset:{1024*ct}'))
            if pend and n - pend[0][0] >= 5:
                P.I(pend.pop(0)[1])
        for _, t in pend:
            P.I(t)

    def reduce_tail(self, ACC, TMP, RES, vW, keep, loads, scaled):
        P = self.P
        I = P.I
        P.run(loads[:4])
        P.wait(lg=0)
        I('s_barrier')
        for ct in range(5):
            for j in range(3):
                I(f'ds_read_b128 {R(TMP + 12*ct + 4*j, 4)}, v{vW} offset:{5120*j + 1024*ct}')
        P.run(loads[4:])
        for ct in range(5):
            for d in range(2):
                t = ACC[ct][2] + 2 * d
                I(f'v_lshlrev_b32 v{t}, 16, v{RES+2*ct+d}')
                I(f'v_and_b32 v{t+1}, 0xffff0000, v{RES+2*ct+d}')
        for ct in range(5):
            a = ACC[ct][0]
            t = TMP + 12 * ct
            for r in (0, 2):
                I(f'v_pk_add_f32 {R(t+r,2)}, {R(t+r,2)}, {R(t+4+r,2)}')
            for r in (0, 2):
                I(f'v_pk_add_f32 {R(a+r,2)}, {R(a+r,2)}, {R(t+8+r,2)}')
            for r in (0, 2):
                I(f'v_pk_add_f32 {R(a+r,2)}, {R(a+r,2)}, {R(t+r,2)}')
            for r in (0, 2):
                if scaled:
                    I(f'v_pk_fma_f32 {R(a+r,2)}, {R(a+r,2)}, s[{sLN2}:{sLN2+1}], {R(ACC[ct][2]+r,2)}')
                else:
                    I(f'v_pk_add_f32 {R(a+r,2)}, {R(a+r,2)}, {R(ACC[ct][2]+r,2)}')
            for d in range(2):
                I(f'v_cvt_pk_bf16_f32 v{keep+2*ct+d}, v{a+2*d}, v{a+2*d+1}')

    def publish_x(self, ACC, keep, rX, vTail, vSt, T):
        P = self.P
        I = P.I
        I(f'buffer_store_dwordx4 {R(keep,4)}, v{vL16}, {SRD(rX)}, s{sXO} offen', tag='pub')
        I(f'buffer_store_dwordx4 {R(keep+4,4)}, v{vL16}, {SRD(rX)}, s{sXO} offen offset:1024', tag='pub')
        I(f'buffer_store_dwordx2 {R(keep+8,2)}, v{vTail}, {SRD(rX)}, s{sXO} offen offset:2048', tag='pub')
        a0 = ACC[0][0]
        I(f'v_pk_add_f32 {R(T,2)}, {R(a0,2)}, {R(a0+2,2)}')
        I(f'v_pk_mul_f32 {R(T+2,2)}, {R(a0,2)}, {R(a0,2)}')
        I(f'v_pk_fma_f32 {R(T+2,2)}, {R(a0+2,2)}, {R(a0+2,2)}, {R(T+2,2)}')
        for ct in range(1, 5):
            a = ACC[ct][0]
            for r in (0, 2):
                I(f'v_pk_add_f32 {R(T,2)}, {R(T,2)}, {R(a+r,2)}')
                I(f'v_pk_fma_f32 {R(T+2,2)}, {R(a+r,2)}, {R(a+r,2)}, {R(T+2,2)}')
        I(f'v_add_f32 v{T}, v{T}, v{T+1}')
        I(f'v_add_f32 v{T+1}, v{T+2}, v{T+3}')
        for sw in ('16', '32'):
            I(f'v_mov_b32 v{T+2}, v{T}')
            I(f'v_mov_b32 v{T+3}, v{T+1}')
            I(f'v_permlane{sw}_swap_b32 v{T}, v{T+2}')
            I(f'v_permlane{sw}_swap_b32 v{T+1}, v{T+3}')
            I(f'v_pk_add_f32 {R(T,2)}, {R(T,2)}, {R(T+2,2)}')
        I(f'buffer_store_dwordx2 {R(T,2)}, v{vSt}, {SRD(rX)}, s{sXO+1} offen', tag='pub')

    def wo_stage(self):
        P = self.P
        I = P.I
        ACC = [[8 + 16 * ct + 4 * j for j in range(4)] for ct in range(5)]
        B = [[88 + 16 * k + 4 * j for j in range(4)] for k in range(5)]
        A = [168 + 4 * j for j in range(4)]
        vS = 184
        vA = vT1
        I(f's_mul_i32 s13, s{sW}, 25600')
        I(f'v_add_u32 v{vA}, s13, v{vL16}')
        rd = lambda f: f'ds_read_b128 {R(A[f % 4],4)}, v{vA} offset:{1024*f}'
        P.wait_tag('wo')
        for f in range(3):
            I(rd(f))
        self.signal(0)
        self.stamp(3)
        self.wq_warm(0, 5, 8)
        self.poll(0, sMASK8)

        def bload(k):
            L = [f'buffer_load_dwordx4 {R(B[k][j],4)}, v{vS+j}, {SRD(rA)}, s{sRUN} offen sc1' for j in range(4)]
            if k < 4:
                L.append(f's_add_u32 s{sRUN}, s{sRUN}, 4096')
            return L
        P.run(bload(0) + bload(1))
        side = bload(2) + bload(3) + bload(4)
        self.stamp(4)
        RES, vTail, vSt = 88, 98, 99
        vW = vS
        A4 = [104, 108, 112, 116, 100]
        for k in range(4):
            for ct in range(5):
                f = 5 * k + ct
                for j in range(4):
                    I(MF16(ACC[ct][j], A[f % 4], B[k][j], k == 0))
                    if j == 0 and f + 3 < 20:
                        I(rd(f + 3))
                    if j == 1:
                        P.need(A[(f + 1) % 4], 4)
                    if j == 2 and ct == 4:
                        P.need(B[k + 1][3], 4)
                    if k == 2 and j == 2:
                        I(f'ds_read_b128 {R(A4[ct],4)}, v{vA} offset:{1024*(20+ct)}')
                    if k == 0 and side and (j >= 2 or ct == 4):
                        I(side.pop(0))
                        if side and side[0].startswith('s_'):
                            I(side.pop(0))
            if k == 0:
                assert not side, side
                self.xs_setup(vTail, vSt)
                I(f'buffer_load_dword v{RES}, v{vSt}, {SRD(rH)}, s{sXO+1} offen')
                P.I(f'buffer_load_dwordx4 {R(RES,4)}, v{vL16}, {SRD(rH)}, s{sXO} offen', nowaw=True)
                I(f'buffer_load_dwordx4 {R(RES+4,4)}, v{vL16}, {SRD(rH)}, s{sXO} offen offset:1024')
                I(f'buffer_load_dwordx2 {R(RES+8,2)}, v{vTail}, {SRD(rH)}, s{sXO} offen offset:2048')
                self.red_setup(vW)
        self.last_kstep(ACC, lambda ct, j: MF16(ACC[ct][j], A4[ct], B[4][j], False), vW, RES)
        self.stamp(5)
        self.reduce_tail(ACC, 104, RES, vW, 172, [], False)
        self.publish_x(ACC, 172, rH, vTail, vSt, 104)
        self.X1K = 172

    def ximage_setup(self, vXB, vSB):
        I = self.P.I
        I(f'v_and_b32 v{vSB}, 15, v{vLANE}')
        I(f'v_bfe_u32 v{vT0}, v{vLANE}, 4, 1')
        I(f'v_mul_u32_u24 v{vXB}, 20480, v{vT0}')
        I(f'v_lshl_add_u32 v{vXB}, v{vSB}, 4, v{vXB}')
        I(f'v_lshrrev_b32 v{vT0}, 5, v{vLANE}')
        I(f'v_lshl_add_u32 v{vXB}, v{vT0}, 8, v{vXB}')
        I(f'v_lshrrev_b32 v{vT0}, 4, v{vLANE}')
        I(f'v_lshlrev_b32 v{vSB}, 3, v{vSB}')
        I(f'v_lshl_add_u32 v{vSB}, v{vT0}, 8, v{vSB}')

    def ximage_srd(self, r):
        I = self.P.I
        I(f's_mul_i32 s13, s{sRB}, 81920')
        I(f's_add_u32 s13, s13, {XS}')
        srd_off(self.P, r, sWS, 's13', 81920)
        I(f's_lshr_b32 s13, s{sBLK}, 3')
        I(f's_lshl_b32 s13, s13, 10')
        I(f's_add_u32 s13, s13, {XS + STT}')
        srd_off(self.P, r + 4, sWS, 's13', 1024)
        I(f's_mul_i32 m0, s{sW}, 20480')

    def ximage_load(self, rX, vSB, SB):
        P = self.P
        I = P.I
        I(f'buffer_load_dwordx2 {R(SB,2)}, v{vSB}, {SRD(rX+4)}, 0 offen sc1')
        I(f'buffer_load_dwordx2 {R(SB+2,2)}, v{vSB}, {SRD(rX+4)}, 0 offen offset:128 sc1')
        L = []
        for i in range(20):
            g = []
            if i and i % 4 == 0:
                g.append('s_add_u32 m0, m0, 4096')
            g.append((f'buffer_load_dwordx4 v{vL16}, {SRD(rX)}, m0 offen offset:{1024*(i%4)} sc1 lds', f'x{i//5}'))
            L.append(g)
        P.run(flat(L[:10]))
        return L[10:]

    def xfrag(self, dst, vXB, ks, tt):
        return f'ds_read_b128 {R(dst,4)}, v{vXB} offset:{tt*40960 + ks*512}'

    def stats_final(self, s1, s2, T):
        a, b = T, T + 1
        L = []
        for s in (s1, s2):
            L += [f'v_mov_b32 v{a}, v{s}', f'v_permlane16_swap_b32 v{s}, v{a}', f'v_add_f32 v{s}, v{s}, v{a}',
                  f'v_mov_b32 v{a}, v{s}', f'v_permlane32_swap_b32 v{s}, v{a}', f'v_add_f32 v{s}, v{s}, v{a}']
        G = T + 4
        inv = '0x3acccccd'
        L += [f'v_mul_f32 v{s1}, {inv}, v{s1}',
              f'v_mul_f32 v{s2}, {inv}, v{s2}',
              f'v_fma_f32 v{s2}, -v{s1}, v{s1}, v{s2}',
              f'v_max_f32 v{s2}, 0, v{s2}',
              f'v_add_f32 v{s2}, 0x3727c5ac, v{s2}',
              f'v_rsq_f32 v{a}, v{s2}',
              f'v_sub_f32 v{s1}, 0, v{s1}',
              f'v_mul_f32 v{s2}, v{s2}, v{a}',
              f'v_cvt_pk_bf16_f32 v{G+1}, v{s1}, v{s2}',
              f'v_lshlrev_b32 v{b}, 16, v{G+1}',
              f'v_sub_f32 v{s1}, v{s1}, v{b}',
              f'v_cvt_pk_bf16_f32 v{G}, v{b}, v{s1}',
              f'v_and_b32 v{b}, 0xffff0000, v{G+1}',
              f'v_sub_f32 v{s2}, v{s2}, v{b}',
              f'v_cvt_pk_bf16_f32 v{G+2}, v{s2}, 0',
              f'v_mov_b32 v{G+3}, 0',
              f's_lshl_b32 s13, s{sW}, 4',
              f'v_and_b32 v{b}, 15, v{vLANE}',
              f'v_add_u32 v{b}, s13, v{b}',
              f'v_lshlrev_b32 v{s1}, 4, v{b}',
              f'v_lshlrev_b32 v{b}, 2, v{b}',
              f'v_add_u32 v{s1}, {L_EX}, v{s1}',
              f'v_add_u32 v{b}, {L_RS}, v{b}',
              f'ds_write_b128 v{s1}, {R(G,4)}',
              f'ds_write_b32 v{b}, v{a}']
        return L

    def stats_fetch(self, BX, RS, T):
        L = [f'v_and_b32 v{T}, 31, v{vLANE}', f'v_lshlrev_b32 v{T+1}, 2, v{T}', f'v_lshlrev_b32 v{T}, 4, v{T}',
             f'v_add_u32 v{T}, {L_EX}, v{T}', f'v_add_u32 v{T+1}, {L_RS}, v{T+1}']
        for tt in range(2):
            L.append(f'ds_read_b128 {R(BX[tt],4)}, v{T} offset:{512*tt}')
            L.append(f'ds_read_b32 v{RS[tt]}, v{T+1} offset:{128*tt}')
        return L

    def dual_pass(self, ACC, W, BB, vXB, SB, T, BX, RS, early, paced=None):
        P = self.P
        nb = len(BB)
        units = [(ks, tt) for ks in range(40) for tt in range(2)]
        AH = nb - 1
        pend_k = 0
        P.I(f'v_add_f32 v{SB}, v{SB}, v{SB+2}')
        P.I(f'v_add_f32 v{SB+1}, v{SB+1}, v{SB+3}')
        P.run(self.stats_final(SB, SB + 1, T))

        def arrive(c):
            P.wait_tag(f'x{c}')
            P.I('s_barrier')
        P.wait(lg=0)
        arrive(0)
        for u in range(AH):
            P.I(self.xfrag(BB[u % nb], vXB, *units[u]))
        P.run(self.stats_fetch(BX, RS, T))
        for u, (ks, tt) in enumerate(units):
            P.I(MF32(ACC[tt], W[ks], BB[u % nb], None if ks == 0 else ACC[tt]))
            un = u + AH
            if un < len(units):
                if un % 20 == 0:
                    arrive(un // 20)
                P.I(self.xfrag(BB[un % nb], vXB, *units[un]))
            if early:
                P.run(flat([early.pop(0)]))
            elif paced and u >= 24 and u % 2 == 0:
                P.I(paced.pop(0))
            if u + 1 < len(units):
                P.need(BB[(u + 1) % nb], 4)
                P.need(W[units[u + 1][0]], 4)
        for tt in range(2):
            P.I(MF32(ACC[tt], W[40], BX[tt], ACC[tt]))

    def mish_tile(self, acc, tt, C, T, rOut):
        PKB = T + 8
        L = []
        for g in range(4):
            a = acc + 4 * g
            t = T + 4 * (g % 2)
            u = T + 16
            L += [f'v_mul_f32 v{a+i}, v{a+i}, v{C[tt]}' for i in range(4)]
            L += [f'v_exp_f32 v{t+i}, v{a+i}' for i in range(4)]
            L += [f'v_fma_f32 v{u+i}, v{t+i}, 0.5, 1.0' for i in range(4)]
            L += [f'v_fma_f32 v{t+i}, v{t+i}, v{u+i}, 1.0' for i in range(4)]
            L += [f'v_rcp_f32 v{t+i}, v{t+i}' for i in range(4)]
            L += [f'v_fma_f32 v{a+i}, -v{a+i}, v{t+i}, v{a+i}' for i in range(4)]
            p = PKB + 4 * (g // 2) + 2 * (g % 2)
            L += [f'v_cvt_pk_bf16_f32 v{p}, v{a}, v{a+1}', f'v_cvt_pk_bf16_f32 v{p+1}, v{a+2}, v{a+3}']
            if g % 2 == 1:
                L.append((f'buffer_store_dwordx4 {R(PKB + 4*(g//2),4)}, v{self.vH}, {SRD(rOut)}, 0 offen offset:{tt*2048 + (g//2)*512}', 'pub'))
        return L

    def ffn1_stage(self):
        P = self.P
        I = P.I
        ACC = [8, 24, 40, 56]
        BB = [72 + 4 * j for j in range(6)]
        RESK = 96
        vXB, vSB, SB = 106, 107, 116
        C = [126, 127]
        BX = [132, 136]
        T = 140
        self.vH = 164
        for r in range(10):
            I(f'v_mov_b32 v{RESK+r}, v{self.X1K+r}')
        self.RESK = RESK
        self.ximage_setup(vXB, vSB)
        self.ximage_srd(rA)
        I(f's_mul_i32 s13, s{sRB}, 221184')
        I(f's_lshl_b32 s14, s{sT+2}, 12')
        I(f's_add_u32 s13, s13, s14')
        I(f's_add_u32 s13, s13, {HF}')
        I(f's_min_u32 s14, s{sT}, 4096')
        srd_off(P, rG, sWS, 's13', 's14')
        I(f's_add_u32 s13, s13, 4096')
        I(f's_min_u32 s14, s{sT+1}, 4096')
        srd_off(P, rH, sWS, 's13', 's14')
        I(f's_mul_i32 s13, s{sHG}, 276480')
        I(f's_mul_i32 s14, s{sW}, 71680')
        I(f's_add_u32 s13, s13, s14')
        I(f's_add_u32 s13, s13, {W2F}')
        I(f's_sub_u32 s14, 276480, s14')
        srd_off(P, rE, sWS, 's13', 's14')
        I(f'v_bfe_u32 v{vT0}, v{vLANE}, 4, 1')
        I(f'v_and_b32 v{self.vH}, 15, v{vLANE}')
        I(f'v_lshlrev_b32 v{self.vH}, 4, v{self.vH}')
        I(f'v_lshl_add_u32 v{self.vH}, v{vT0}, 10, v{self.vH}')
        I(f'v_lshrrev_b32 v{vT0}, 5, v{vLANE}')
        I(f'v_lshl_add_u32 v{self.vH}, v{vT0}, 8, v{self.vH}')
        self.signal(1)
        self.stamp(6)
        self.wq_warm(5, 11, 8)
        self.poll(1, sMASK1)
        early = self.ximage_load(rA, vSB, SB)
        self.stamp(7)
        w2 = [fragload(W1B[40], rD, 40)] + [fragload(W2R[f], rE, f) for f in range(70)]
        self.dual_pass(ACC[0:2], W1A, BB, vXB, SB, T, BX, C, early, w2)
        self.stamp(8)
        for tt in range(2):
            I(f'v_mul_f32 v{C[tt]}, 0x3fb8aa3b, v{C[tt]}')
        nb = len(BB)
        units = [(ks, tt) for tt in range(2) for ks in range(40)]
        main = []
        AH = nb - 1
        pre = [self.xfrag(BB[u % nb], vXB, *units[u]) for u in range(AH)]
        for u, (ks, tt) in enumerate(units):
            g = [MF32(ACC[2 + tt], W1B[ks], BB[u % nb], None if ks == 0 else ACC[2 + tt])]
            if u + AH < len(units):
                g.append(self.xfrag(BB[(u + AH) % nb], vXB, *units[u + AH]))
            if u % 5 in (0, 3):
                f = 70 - len(w2)
                assert f < 45 or (tt == 1 and f - 45 <= ks)
                g.append(w2.pop(0))
            if u + 1 < len(units):
                g.append(NEED(BB[(u + 1) % nb]))
            main.append(g)
            if ks == 39:
                main.append([MF32(ACC[2 + tt], W1B[40], BX[tt], ACC[2 + tt])])
        e0 = self.mish_tile(ACC[0], 0, C, T, rG)
        e1 = self.mish_tile(ACC[1], 1, C, T, rG)
        e2 = self.mish_tile(ACC[2], 0, C, T, rH)
        e3 = self.mish_tile(ACC[3], 1, C, T, rH)
        n1 = 55
        seq = weave_cost(main[:n1], e0 + e1) + weave_cost(main[n1:], e2)
        P.run(pre)
        seq = flat(seq)
        txt = lambda it: '' if callable(it) else (it[0] if isinstance(it, tuple) else it)
        if self.dbg.get('p3_noload'):
            seq = [it for it in seq if not txt(it).startswith('buffer_load')]
        if self.dbg.get('p3_nostore'):
            seq = [it for it in seq if not txt(it).startswith('buffer_store')]
        if self.dbg.get('p3_nods'):
            seq = [it for it in seq if not txt(it).startswith('ds_') and not callable(it)]
        if self.dbg.get('p3_novalu'):
            seq = [it for it in seq if not (txt(it).startswith('v_') and 'mfma' not in txt(it))]
        P.run(seq)
        self.stamp(9)
        P.run(e3[:27] + [w2.pop(0)] + e3[27:54] + [w2.pop(0)] + e3[54:80] + [w2.pop(0)] + e3[80:])
        self.w2_left = w2

    def ffn2_stage(self):
        P = self.P
        I = P.I
        ACC = [[8 + 16 * ct + 4 * j for j in range(4)] for ct in range(5)]
        vS, vW, vTail, vSt = 88, 92, 106, 107
        HB = HBUF[:31] + [HBUF[31]]
        ND = 4
        HB = HBUF[:4 * ND]
        self.slot_offsets(vS)
        self.red_setup(vW)
        self.xs_setup(vTail, vSt)
        I(f's_mul_i32 s13, s{sRB}, 221184')
        I(f's_add_u32 s13, s13, {HF}')
        srd_off(P, rA, sWS, 's13', 221184)
        I(f's_mul_i32 s{sRUN}, s{sW}, {14*4096}')
        self.xs_srd(rB, sWS, XS)
        self.wq_srd()
        I(f's_cmp_eq_u32 s{sMODE}, 2')
        I(f's_cselect_b32 s{rF+2}, 0, s{rF+2}')
        self.signal(2)
        self.stamp(10)
        P.run(self.w2_left)
        self.w2_left = []
        self.poll(2, sMASK8)

        def hload(k):
            L = [f'buffer_load_dwordx4 {R(HB[4*(k%ND)+j],4)}, v{vS+j}, {SRD(rA)}, s{sRUN} offen sc1' for j in range(4)]
            if k < 13:
                L.append(f's_add_u32 s{sRUN}, s{sRUN}, 4096')
            return L
        for k in range(2):
            P.run(hload(k))
        self.stamp(11)
        wq = 0
        P.run(hload(2))
        w2 = self.w2_left
        for k in range(13):
            side = hload(k + 3) if k + 3 < 14 else []
            other = None
            if w2 and k >= 1:
                assert (70 - len(w2)) // 5 > k + 1
                other = w2.pop(0)
            if not side:
                side = [fragload(WQR[wq + i], rF, wq + i) for i in range(4)]
                wq += 4
            n = 0
            for ct in range(5):
                for j in range(4):
                    I(MF16(ACC[ct][j], W2R[5 * k + ct], HB[4 * (k % ND) + j], k == 0))
                    if n % 5 == 1:
                        I(side.pop(0))
                        if side and side[0].startswith('s_'):
                            I(side.pop(0))
                    if n == 8 and other:
                        I(other)
                    if n == 18:
                        P.need(HB[4 * ((k + 1) % ND) + 3], 4)
                    n += 1
            assert not side
        assert not w2
        self.last_kstep(ACC, lambda ct, j: MF16(ACC[ct][j], W2R[65 + ct], HB[4 * (13 % ND) + j], False), vW, self.RESK)
        self.stamp(12)
        self.reduce_tail(ACC, 108, self.RESK, vW, 12, [fragload(WQR[wq + i], rF, wq + i) for i in range(8)], True)
        wq += 8
        I(f's_cmp_eq_u32 s{sMODE}, 2')
        I('s_cbranch_scc1 Lout')
        self.publish_x(ACC, 12, rB, vTail, vSt, 108)
        self.wq_next = wq

    def out_stage(self):
        P = self.P
        I = P.I
        P.label('Lout')
        I(f's_mul_i32 s13, s{sRB}, 81920')
        I(f's_mul_i32 s14, s{sHG}, 160')
        I(f's_add_u32 s13, s13, s14')
        I(f's_mul_i32 s14, s{sW}, 20480')
        I(f's_add_u32 s13, s13, s14')
        srd(P, rG, sOUT, sOUT + 1, 2048 * 1280)
        I(f'v_and_b32 v{vT1}, 15, v{vLANE}')
        I(f'v_mul_u32_u24 v{vT1}, 1280, v{vT1}')
        I(f'v_lshrrev_b32 v{vT0}, 4, v{vLANE}')
        I(f'v_lshl_add_u32 v{vT0}, v{vT0}, 3, v{vT1}')
        for ct in range(5):
            I(f'buffer_store_dwordx2 {R(12+2*ct,2)}, v{vT0}, {SRD(rG)}, s13 offen offset:{32*ct}')
        I('s_branch Lfin')
        P.forget()

    def qkv_stage(self):
        P = self.P
        I = P.I
        ACC = [8, 24]
        BB = [72 + 4 * j for j in range(6)]
        vXB, vSB, SB = 106, 107, 116
        RS = [126, 127]
        BX = [132, 136]
        T = 140
        self.ximage_setup(vXB, vSB)
        self.ximage_srd(rG)
        self.signal(3)
        self.stamp(13)
        for k in range(self.wq_next, self.WQ_EARLY):
            I(fragload(WQR[k], rF, k))
        self.poll(3, sMASK1)
        early = self.ximage_load(rG, vSB, SB)
        rest = [fragload(WQR[k], rF, k) for k in range(self.WQ_EARLY, 41)]
        early += [g for t in rest for g in ([t], [])]
        self.stamp(14)
        setup = self.qkv_out_setup()
        for i in range(10, len(early)):
            if not early[i] and setup:
                early[i] = flat([setup.pop(0), setup.pop(0) if setup else []])
        early += [flat([t]) for t in setup]
        self.dual_pass(ACC, WQR, BB, vXB, SB, T, BX, RS, early)
        self.stamp(15)
        self.qkv_epilogue(RS)
        P.label('Lfin')
        self.stamp(16)
        P.label('Lend')
        I('s_endpgm')
        P.forget()

    def qkv_out_setup(self):
        vC0, vC1, vVW, vVR, vVS, vL8 = 40, 41, 42, 43, 44, 45
        so = lambda d, off, n: [[f's_add_u32 s{d}, s{sLBN}, {off}', f's_addc_u32 s{d+1}, s{sLBN+1}, 0'],
                                f's_mov_b32 s{d+2}, {n}', f's_mov_b32 s{d+3}, 0x20000']
        L = [f's_lshl_b32 s17, s{sRB}, 3', f's_add_u32 s17, s17, s{sHG}', f's_mul_i32 s17, s17, 12288',
             f's_mul_i32 s18, s{sW}, 3072', f's_add_u32 s17, s17, s18', f's_add_u32 s17, s17, {QF}']
        L += so(rB, 's17', 3072)
        L += [f's_mul_i32 s17, s{sRB}, 7168', f's_add_u32 s17, s17, {KVF}',
              [f's_cmp_eq_u32 s{sHG}, 0', f's_cselect_b32 s18, 7168, 0'],
              [f's_cmp_lt_u32 s{sW}, 3', f's_cselect_b32 s18, s18, 0']]
        L += so(rC, 's17', 's18')
        L += [[f's_cmp_eq_u32 s{sHG}, 1', f's_cselect_b32 s18, 7168, 0']]
        L += so(rD, 's17', 's18')
        L += [f's_mov_b32 s15, 0x3f80', f's_mov_b32 s16, 0x3f803f80',
              [f's_cmp_eq_u32 s{sHG}, 0', f's_cselect_b32 s16, s16, s15', f's_cselect_b32 s15, s15, 0'],
              f'v_mov_b32 v{vC0}, s16', f'v_mov_b32 v{vC1}, s15',
              f's_lshl_b32 s15, s{sW}, 3', f's_add_u32 s16, s15, 1024',
              [f's_cmp_eq_u32 s{sW}, 2', f's_cselect_b32 s15, 2048, s15', f's_cselect_b32 s16, 2056, s16'],
              f's_lshl_b32 s17, s{sW}, 11', f's_add_u32 s17, s17, {L_VT}',
              f'v_lshrrev_b32 v{vT0}, 5, v{vLANE}', f'v_mul_u32_u24 v{vT0}, {4*144}, v{vT0}',
              f'v_and_b32 v{vT1}, 31, v{vLANE}', f'v_lshl_add_u32 v{vVW}, v{vT1}, 1, v{vT0}',
              f'v_add_u32 v{vVW}, s17, v{vVW}', f'v_and_b32 v{vT0}, 7, v{vLANE}', f'v_lshrrev_b32 v{vT1}, 3, v{vLANE}',
              f'v_mul_u32_u24 v{vVR}, 144, v{vT0}', f'v_lshl_add_u32 v{vVR}, v{vT1}, 4, v{vVR}',
              f'v_add_u32 v{vVR}, s17, v{vVR}', f'v_lshlrev_b32 v{vVS}, 9, v{vT1}',
              f'v_lshl_add_u32 v{vVS}, v{vT0}, 4, v{vVS}', f'v_lshlrev_b32 v{vL8}, 3, v{vLANE}',
              f's_lshl_b32 s19, s{sW}, 7']
        return L

    def qkv_epilogue(self, RS, PK=48, VB=64):
        P = self.P
        I = P.I
        ACC = [8, 24]
        qsb = struct.unpack('<I', struct.pack('<f', 20 ** -0.5 * math.log2(math.e)))[0]
        vC0, vC1, vVW, vVR, vVS, vL8 = 40, 41, 42, 43, 44, 45
        SC = [72, 74]
        I(f's_cmp_eq_u32 s{sW}, 2')
        I(f's_cselect_b32 vcc_hi, -1, 0')
        I(f's_mov_b32 vcc_lo, 0')
        for tt in range(2):
            I(f'v_mul_f32 v{SC[tt]}, {qsb:#x}, v{RS[tt]}')
            I(f'v_mul_f32 v{SC[tt]+1}, {qsb:#x}, v{RS[tt]}')
        for tt in range(2):
            a = ACC[tt]
            p = PK + 8 * tt
            for r in range(12, 16):
                I(f'v_mul_f32 v{a+r}, v{a+r}, v{RS[tt]}')
            for d in range(2):
                I(f'v_cvt_pk_bf16_f32 v{p+6+d}, v{a+12+2*d}, v{a+13+2*d}')
            I(f'v_cndmask_b32 v{p+6}, v{p+6}, v{vC0}, vcc')
            I(f'v_cndmask_b32 v{p+7}, v{p+7}, v{vC1}, vcc')
            I(f'buffer_store_dwordx2 {R(p+6,2)}, v{vL16}, {SRD(rC)}, s{15+tt} offen')
            I(f'ds_write_b16 v{vVW}, v{p+6} offset:{64*tt}')
            I(f'ds_write_b16_d16_hi v{vVW}, v{p+6} offset:{64*tt+144}')
            I(f'ds_write_b16 v{vVW}, v{p+7} offset:{64*tt+288}')
            I(f'ds_write_b16_d16_hi v{vVW}, v{p+7} offset:{64*tt+432}')
        I(f'ds_read_b128 {R(VB,4)}, v{vVR}')
        for tt in range(2):
            a = ACC[tt]
            p = PK + 8 * tt
            for r in range(0, 12, 2):
                I(f'v_pk_mul_f32 {R(a+r,2)}, {R(a+r,2)}, {R(SC[tt],2)}')
            for d in range(6):
                I(f'v_cvt_pk_bf16_f32 v{p+d}, v{a+2*d}, v{a+2*d+1}')
            I(f'buffer_store_dwordx4 {R(p,4)}, v{vL16}, {SRD(rB)}, 0 offen offset:{1536*tt}')
            I(f'buffer_store_dwordx2 {R(p+4,2)}, v{vL8}, {SRD(rB)}, 0 offen offset:{1536*tt+1024}')
        I(f'buffer_store_dwordx4 {R(VB,4)}, v{vVS}, {SRD(rD)}, s19 offen offset:3072')

    def build(self):
        self.in_front = False
        self.prologue()
        self.attention()
        self.wo_stage()
        self.ffn1_stage()
        self.ffn2_stage()
        self.qkv_stage()
        self.out_stage()
        self.fallback()
```
